```python
import torch

def _softmax(x, axis=-1):
    return torch.softmax(x, dim=axis)
def _gelu(x):
    return torch.nn.functional.gelu(x, approximate="tanh")
def _silu(x):
    return torch.nn.functional.silu(x)
def _sigmoid(x):
    return torch.sigmoid(x)
def _layernorm(x, axis=-1, eps=1e-5):
    m = x.mean(dim=axis, keepdim=True)
    v = x.var(dim=axis, keepdim=True, unbiased=False)
    return (x - m) / torch.sqrt(v + eps)
def _scatter_add(tgt, idx, src, axis=0):
    return tgt.clone().index_add_(axis, idx, src)
def _segment_sum(src, seg, n):
    out = torch.zeros((n,) + src.shape[1:], dtype=src.dtype)
    return out.index_add_(0, seg, src)
def _pad(x, pw):
    flat = tuple(v for pair in reversed(pw) for v in pair)
    return torch.nn.functional.pad(x, flat)

kernel_name = 'sequential_preLN__linear_attn_block__geglu_ffn__prompt'

def setup_inputs():

    _w = (lambda a: (lambda t: t.to(torch.bfloat16) if t.is_floating_point() else t)(torch.as_tensor(a)))
    def _A_setup():
        B, S, D = 1, 2048, 512
        return {
            "x": _w((lambda *s: torch.randn(*s, dtype=torch.bfloat16) * 0.05)(B, S, D)),
            "wqkv": _w((lambda *s: torch.randn(*s, dtype=torch.bfloat16) * 0.05)(D, 3 * D)),
            "wo": _w((lambda *s: torch.randn(*s, dtype=torch.bfloat16) * 0.05)(D, D)),
        }
    _A_in = _A_setup()

    def _B_setup():
        B, S, D, F = 1, 2048, 512, 1792
        return {
            "x": _w((lambda *s: torch.randn(*s, dtype=torch.bfloat16) * 0.05)(B, S, D)),
            "w_gate": _w((lambda *s: torch.randn(*s, dtype=torch.bfloat16) * 0.05)(D, F)),
            "w_up": _w((lambda *s: torch.randn(*s, dtype=torch.bfloat16) * 0.05)(D, F)),
            "w_down": _w((lambda *s: torch.randn(*s, dtype=torch.bfloat16) * 0.05)(F, D)),
        }
    _B_in = _B_setup()

    return {
        "A_x": _A_in["x"],
        "A_wqkv": _A_in["wqkv"],
        "A_wo": _A_in["wo"],
        "B_x": _B_in["x"],
        "B_w_gate": _B_in["w_gate"],
        "B_w_up": _B_in["w_up"],
        "B_w_down": _B_in["w_down"],
    }

def reference(A_x, A_wqkv, A_wo, B_x, B_w_gate, B_w_up, B_w_down):
    def _A_ref(x, wqkv, wo):
        B, S, D = x.shape
        H = 32; Dh = D // H
        qkv = (lambda x, *d: x.permute(*d))((x @ wqkv).reshape(B, S, 3, H, Dh), 2, 0, 3, 1, 4)
        q, k, v = qkv[0], qkv[1], qkv[2]
        phi = lambda t: torch.where(t > 0, t + 1, torch.exp(t)) + 1e-6
        pq, pk = phi(q), phi(k)
        kv = torch.einsum("bhsd,bhse->bhde", pk, v)
        z = torch.einsum("bhsd->bhd", pk)
        num = torch.einsum("bhqd,bhde->bhqe", pq, kv)
        den = torch.einsum("bhqd,bhd->bhq", pq, z)[..., None] + 1e-6
        o = num / den
        return (lambda x, *d: x.permute(*d))(o, 0, 2, 1, 3).reshape(B, S, D) @ wo

    def _B_ref(x, w_gate, w_up, w_down):
        return (_gelu(x @ w_gate) * (x @ w_up)) @ w_down

    x = A_x
    h = x + _A_ref(_layernorm(x, axis=-1), A_wqkv, A_wo)
    h2 = h + _B_ref(_layernorm(h, axis=-1), B_w_gate, B_w_up, B_w_down)
    return h2
```

```python
import re

REG_RE = re.compile(r"\b([vsa])\[(\d+):(\d+)\]|\b([vsa])(\d+)\b|\b(vcc|exec|m0|scc)\b|\b(vcc_lo|vcc_hi|exec_lo|exec_hi)\b")

def regs_of(op):
    out = []
    for m in REG_RE.finditer(op):
        if m.group(1):
            out += [(m.group(1), i) for i in range(int(m.group(2)), int(m.group(3)) + 1)]
        elif m.group(4):
            out.append((m.group(4), int(m.group(5))))
        elif m.group(6):
            out.append((m.group(6), 0))
        else:
            out.append((m.group(7)[:-3], 0))
    return out

TRANS = ("v_exp_f32", "v_log_f32", "v_rcp_f32", "v_rsq_f32", "v_sqrt_f32", "v_sin_f32", "v_cos_f32", "v_rcp_iflag_f32")

class Inst:
    def __init__(self, text):
        self.text = text
        t = text.split(";")[0].strip()
        parts = t.split(None, 1)
        self.mn = parts[0]
        rest = parts[1] if len(parts) > 1 else ""
        ops, cur, depth = [], "", 0
        for ch in rest:
            if ch in "[(": depth += 1
            if ch in "])": depth -= 1
            if ch == "," and depth == 0:
                ops.append(cur.strip()); cur = ""
            else:
                cur += ch
        if cur.strip(): ops.append(cur.strip())
        self.ops = ops
        mn = self.mn
        self.is_mfma = mn.startswith("v_mfma")
        self.is_valu = mn.startswith("v_") and not self.is_mfma
        self.is_salu = mn.startswith("s_")
        self.is_vmem = mn.startswith(("buffer_", "global_", "flat_", "scratch_"))
        self.is_ds = mn.startswith("ds_")
        self.is_trans = mn.replace("_e32", "").replace("_e64", "") in TRANS
        self.is_dot = mn.startswith("v_dot")
        self.is_dpp = ("_dpp" in mn) or any(k in rest for k in ("quad_perm", "row_shr", "row_shl", "row_ror", "row_bcast", "row_mirror", "row_half_mirror", "row_newbcast"))
        self.is_permlane = mn.startswith("v_permlane")
        self.is_lane = mn.startswith(("v_readlane", "v_readfirstlane", "v_writelane"))
        self.is_ldsdma = self.is_vmem and (" lds" in (" " + rest) or "_lds_" in mn)
        self.passes = 0
        if self.is_mfma:
            self.passes = 8 if "32x32" in mn else 4
        R = [regs_of(o) for o in ops]
        w, r = [], []
        self.srcC = []
        self.store_data = []
        if self.is_mfma:
            w = R[0]; r = R[1] + R[2] + R[3]; self.srcC = R[3]; self.srcAB = R[1] + R[2]
        elif self.is_valu:
            if mn.startswith("v_cmp"):
                w = R[0]; r = sum(R[1:], [])
                if mn.startswith("v_cmpx"): w = w + [("exec", 0)]
            elif mn.startswith(("v_add_co", "v_sub_co", "v_addc_co", "v_subb_co", "v_subrev_co", "v_div_scale", "v_mad_u64")):
                w = R[0] + R[1]; r = sum(R[2:], [])
            elif self.is_permlane and "swap" in mn:
                w = R[0] + R[1]; r = R[0] + R[1]
            elif mn.startswith(("v_fmac", "v_dot2c", "v_pk_fmac", "v_writelane")) or self.is_dpp:
                w = R[0]; r = sum(R, [])
            elif mn.startswith("v_nop"):
                pass
            else:
                w = R[0]; r = sum(R[1:], [])
                if mn.startswith("v_cndmask") and len(ops) == 3: r = r + [("vcc", 0)]
        elif self.is_vmem:
            if self.is_ldsdma:
                r = sum(R, []) + [("m0", 0)]
            elif "store" in mn:
                r = sum(R, [])
                self.store_data = R[0] if mn.startswith("buffer") else R[1]
            elif "atomic" in mn:
                r = sum(R, [])
                if " sc0" in (" " + rest):
                    w = R[0]
            elif "load" in mn:
                w = R[0]; r = sum(R[1:], [])
        elif self.is_ds:
            if mn.startswith(("ds_read", "ds_bpermute", "ds_permute", "ds_swizzle")) or "_rtn" in mn:
                w = R[0]; r = sum(R[1:], [])
            else:
                r = sum(R, [])
        elif self.is_salu:
            if mn.startswith(("s_cmp", "s_cbranch", "s_branch", "s_waitcnt", "s_barrier", "s_nop", "s_endpgm", "s_sleep", "s_setprio", "s_bitcmp")):
                r = sum(R, [])
            else:
                w = R[0] if R else []; r = sum(R[1:], [])
                if "saveexec" in mn: w = w + [("exec", 0)]
        self.w = set(w); self.r = set(r)
        self.wide_store = self.is_vmem and ("x3" in mn or "x4" in mn) and "store" in mn
        self.states = 1
        if mn == "s_nop":
            self.states = int(ops[0], 0) + 1

def need(p, c):
    n = 0
    vw = {x for x in p.w if x[0] in "va"}
    sw = {x for x in p.w if x[0] not in "va" or x[0] == "vcc"}
    sw = {x for x in p.w if x[0] in ("s", "vcc")}
    if p.is_mfma:
        tbl = {4: (6, 8), 8: (10, 12)}[p.passes]
        if c.is_mfma:
            if set(c.srcAB) & vw: n = max(n, tbl[1])
            if set(c.srcC) & vw:
                if not (set(c.srcC) == vw and c.passes == p.passes): n = max(n, tbl[0])
            elif c.w & vw:
                n = max(n, tbl[1])
        elif (c.r | c.w) & vw:
            n = max(n, tbl[1])
        if c.is_valu and (c.w & set(p.srcC)):
            n = max(n, {4: 3, 8: 7}[p.passes])
        if (c.is_ds or c.is_vmem) and (c.w & set(p.srcC)):
            n = max(n, {4: 3, 8: 7}[p.passes])
    if p.is_valu:
        if c.is_mfma and (c.r & vw): n = max(n, 3 if p.is_dot else 2)
        if p.is_dot:
            if c.is_dot and c.mn == p.mn:
                srcs = set(sum([regs_of(o) for o in c.ops[1:3]], []))
                if srcs & vw: n = max(n, 3)
            elif (c.r | c.w) & vw: n = max(n, 3)
        if p.is_trans and c.is_valu and not c.is_trans and (c.r & vw): n = max(n, 1)
        if p.is_trans and (c.is_mfma or c.is_vmem or c.is_ds) and (c.r & vw): n = max(n, 2)
        if c.is_valu and c.is_dpp and (c.r & vw): n = max(n, 2)
        if c.is_permlane and (c.r & vw): n = max(n, 2)
        if c.is_lane and (c.r & vw): n = max(n, 1)
        if sw:
            if c.is_valu and (c.r & sw): n = max(n, 4 if c.is_lane else 2)
            if c.is_vmem and (c.r & sw): n = max(n, 5)
            if c.is_salu and (c.r & sw): n = max(n, 1)
            if c.mn.startswith("s_cbranch_vcc") and ("vcc", 0) in sw: n = max(n, 1)
        if ("exec", 0) in p.w:
            if c.is_dpp: n = max(n, 5)
            if c.is_mfma or c.is_permlane or c.is_lane: n = max(n, 4)
        if "sdwa" in p.mn or "op_sel" in p.text:
            if c.is_valu and ((c.r | c.w) & vw): n = max(n, 1)
    if p.is_salu and ("m0", 0) in p.w and c.is_ldsdma: n = max(n, 1)
    if p.wide_store and (c.w & set(p.store_data)): n = max(n, 2)
    return n

class Prog:
    def __init__(self):
        self.items = []
    def __call__(self, text):
        for line in text.split("\n"):
            s = line.strip()
            if not s or s.startswith(";"):
                if s: self.items.append(("r", "    " + s))
                continue
            if s.endswith(":") and " " not in s:
                self.items.append(("l", s[:-1]))
            elif s.startswith("."):
                self.items.append(("r", s))
            else:
                self.items.append(("i", Inst(s)))
    def raw(self, text):
        self.items.append(("r", text))
    def finalize(self):
        MAXH = 24
        pad = {}
        label_in = {}
        for sweep in range(3):
            hist = []
            def merge(a, b):
                d = {}
                for inst, age in a + b:
                    k = id(inst)
                    if k not in d or age < d[k][1]: d[k] = [inst, age]
                return list(d.values())
            for idx, (kind, it) in enumerate(self.items):
                if kind == "l":
                    hist = merge(hist, label_in.get(it, []))
                elif kind == "i":
                    req = 0
                    for p, age in hist:
                        req = max(req, need(p, it) - age)
                    req = max(req, pad.get(idx, 0))
                    pad[idx] = req
                    adv = req + it.states
                    hist = [[p, age + adv] for p, age in hist if age + adv < MAXH]
                    hist.append([it, 0])
                    if it.mn.startswith(("s_cbranch", "s_branch")):
                        tgt = it.ops[0]
                        label_in[tgt] = merge(label_in.get(tgt, []), [[p, a] for p, a in hist])
                        if it.mn == "s_branch": hist = []
                    if it.mn == "s_endpgm": hist = []
        out = []
        nn = 0
        for idx, (kind, it) in enumerate(self.items):
            if kind == "l": out.append(it + ":")
            elif kind == "r": out.append(it)
            else:
                r = pad.get(idx, 0)
                while r > 0:
                    k = min(r, 16)
                    out.append(f"    s_nop {k-1}")
                    r -= k; nn += 1
                out.append("    " + it.text)
        return "\n".join(out) + "\n"
```

```python
import sys
from asmkit import Prog

NAME = "sequential_preLN__linear_attn_block__geglu_ffn__prompt"
WS_KVZ, WS_STATS, WS_PQ, WS_HF, WS_AF, WS_END = 0, 0x10000, 0x100000, 0x300000, 0x500000, 0xC00000
LOG2E = 0x3fb8aa3b
EPS6 = 0x358637bd
EPS5 = 0x3727c5ac

def f2u(x):
    import struct
    return struct.unpack("<I", struct.pack("<f", x))[0]

def vr(a, n): return f"v[{a}:{a+n-1}]"
def sr(a, n): return f"s[{a}:{a+n-1}]"

def srd(P, d, b, nbytes):
    P(f"s_mov_b32 s{d}, s{b}\ns_mov_b32 s{d+1}, s{b+1}\ns_mov_b32 s{d+2}, {nbytes}\ns_mov_b32 s{d+3}, 0x20000")

def head(P, name):
    P.raw(f".text\n.globl {name}\n.p2align 8\n.type {name},@function")
    P(f"{name}:")
    P(f"s_cmp_ge_u32 s2, 256\ns_cbranch_scc1 {name}_end")

def tail(P, name, vgpr):
    P(f"{name}_end:\ns_endpgm")
    P.raw(f""".section .rodata,"a"
.p2align 6
.amdhsa_kernel {name}
  .amdhsa_next_free_vgpr {vgpr}
  .amdhsa_next_free_sgpr 96
  .amdhsa_accum_offset {vgpr}
  .amdhsa_group_segment_fixed_size 0
  .amdhsa_kernarg_size 80
  .amdhsa_user_sgpr_count 2
  .amdhsa_user_sgpr_kernarg_segment_ptr 1
  .amdhsa_system_sgpr_workgroup_id_x 1
.end_amdhsa_kernel""")

def reduce8(P, v, t):
    P(f"v_add_f32_dpp v{v}, v{v}, v{v} quad_perm:[1,0,3,2] row_mask:0xf bank_mask:0xf")
    P(f"v_add_f32_dpp v{v}, v{v}, v{v} quad_perm:[2,3,0,1] row_mask:0xf bank_mask:0xf")
    P(f"v_add_f32_dpp v{v}, v{v}, v{v} row_half_mirror row_mask:0xf bank_mask:0xf")

def phi(P, regs, tmp, s_log2e, s_eps):
    for r, t in zip(regs, tmp): P(f"v_min_f32 v{t}, 0, v{r}")
    for r, t in zip(regs, tmp): P(f"v_mul_f32 v{t}, s{s_log2e}, v{t}")
    for r, t in zip(regs, tmp): P(f"v_exp_f32 v{t}, v{t}")
    for r, t in zip(regs, tmp): P(f"v_max_f32 v{r}, 0, v{r}")
    for r, t in zip(regs, tmp): P(f"v_add_f32 v{r}, s{s_eps}, v{r}")
    for r, t in zip(regs, tmp): P(f"v_add_f32 v{r}, v{r}, v{t}")

def kernel_a(P):
    name = "ka_kernel"
    head(P, name)
    SX, SW, SWS = 8, 12, 16
    sw, stb, sj, sc0, st, sh = 24, 25, 26, 27, 28, 29
    P("s_load_dwordx4 s[4:7], s[0:1], 0")
    P("s_load_dwordx4 s[20:23], s[0:1], 64")
    P("v_and_b32 v1, 63, v0\nv_lshrrev_b32 v2, 6, v0")
    P(f"v_readfirstlane_b32 s{sw}, v2")
    P(f"s_and_b32 s3, s2, 7\ns_lshr_b32 s30, s2, 3\ns_lshr_b32 s31, s30, 3")
    P(f"s_lshl_b32 s{stb}, s3, 2\ns_add_u32 s{stb}, s{stb}, s31\ns_and_b32 s{sj}, s30, 7")
    P(f"s_lshl_b32 s31, s31, 1\ns_add_u32 s{sc0}, s{sj}, s31")
    for i in range(8):
        P(f"s_add_u32 s{32+i}, s{sc0}, {i}\ns_and_b32 s{32+i}, s{32+i}, 7")
    P(f"s_lshr_b32 s{st}, s{sw}, 2\ns_and_b32 s{sh}, s{sw}, 3")
    P(f"v_lshrrev_b32 v4, 3, v1\nv_and_b32 v5, 7, v1")
    P(f"s_lshl_b32 s30, s{stb}, 6\ns_lshl_b32 s31, s{sw}, 3\ns_add_u32 s30, s30, s31")
    P(f"v_add_u32 v3, s30, v4\nv_lshlrev_b32 v3, 10, v3\nv_lshl_add_u32 v3, v5, 4, v3")
    P(f"v_add_u32 v6, s31, v4\nv_mul_u32_u24 v6, 3072, v6")
    P(f"v_bfe_u32 v7, v1, 4, 1\ns_and_b32 s30, s{sw}, 1\ns_lshl_b32 s30, s30, 1\nv_or_b32 v7, s30, v7\nv_lshlrev_b32 v7, 1, v7\nv_xor_b32 v7, v5, v7")
    P(f"v_lshl_add_u32 v6, v7, 4, v6\ns_lshl_b32 s30, s{sj}, 7\nv_add_u32 v6, s30, v6")
    P("s_waitcnt lgkmcnt(0)")
    srd(P, SX, 4, 2048*1024); srd(P, SW, 6, 512*3072); srd(P, SWS, 22, WS_END)
    P(f"s_cmp_eq_u32 s{stb}, 0\ns_cselect_b32 s40, s{sw}, 0\ns_cmp_eq_u32 s40, 7\ns_cbranch_scc0 ka_nozero")
    P(f"v_mov_b32 v8, 0\nv_mov_b32 v9, 0\nv_mov_b32 v10, 0\nv_mov_b32 v11, 0")
    P(f"s_mul_i32 s30, s{sj}, 4352\nv_lshlrev_b32 v12, 4, v1")
    for i in range(4):
        P(f"buffer_store_dwordx4 v[8:11], v12, {sr(SWS,4)}, s30 offen offset:{i*1024} sc0 sc1")
    P(f"s_add_u32 s30, s30, 4096\ns_mov_b64 exec, 0xffff")
    P(f"buffer_store_dwordx4 v[8:11], v12, {sr(SWS,4)}, s30 offen sc0 sc1")
    P("s_mov_b64 exec, -1")
    P("ka_nozero:")
    XR = 64
    for i in range(8):
        P(f"s_lshl_b32 s30, s{32+i}, 7")
        P(f"buffer_load_dwordx4 {vr(XR+4*i,4)}, v3, {sr(SX,4)}, s30 offen")
    RING = 65536
    P(f"s_mul_i32 s41, s{sw}, 3072\ns_add_u32 s41, s41, {RING}")
    def dma(i):
        slot = i & 3
        P(f"s_add_u32 m0, s41, {slot*24576}\ns_mul_i32 s30, s{32+i}, 196608")
        for m in range(3):
            P(f"buffer_load_dwordx4 v6, {sr(SW,4)}, s30 offen offset:{m*1024} lds")
    for i in range(4): dma(i)
    P(f"v_xor_b32 v8, v5, v4\nv_lshlrev_b32 v8, 4, v8\nv_add_u32 v9, s31, v4\nv_lshl_add_u32 v8, v9, 7, v8")
    P(f"v_and_b32 v11, 15, v1\nv_lshrrev_b32 v12, 4, v1")
    P(f"v_xor_b32 v9, v12, v5\nv_lshlrev_b32 v9, 4, v9\nv_lshl_add_u32 v9, v11, 7, v9\ns_lshl_b32 s30, s{st}, 12\nv_add_u32 v9, s30, v9\nv_xor_b32 v10, 64, v9")
    P(f"v_mul_u32_u24 v13, 3072, v12\nv_lshrrev_b32 v14, 2, v11\nv_lshl_add_u32 v13, v14, 7, v13")
    P(f"v_bfe_u32 v14, v1, 3, 2\nv_xor_b32 v14, s{sh}, v14\nv_lshl_add_u32 v13, v14, 5, v13")
    P(f"v_and_b32 v14, 3, v1\nv_lshl_add_u32 v13, v14, 3, v13\nv_add_u32 v13, {RING}, v13\nv_add_u32 v14, 49152, v13")
    P(f"s_mov_b32 s42, 0xffff0000\nv_mov_b32 v15, 0x3f803f80")
    P("s_waitcnt vmcnt(12)")
    P(f"s_cmp_eq_u32 s40, 7\ns_cbranch_scc0 ka_noflag")
    P(f"s_lshl_b32 s30, s{sj}, 2\nv_mov_b32 v16, s30\nv_mov_b32 v17, 1\ns_mov_b64 exec, 1")
    P(f"global_store_dword v16, v17, s[20:21] sc0 sc1\ns_mov_b64 exec, -1")
    P("ka_noflag:")
    XF = 96
    P("v_mov_b32 v16, 0\nv_mov_b32 v17, 0")
    for i in range(32):
        P(f"v_dot2_f32_bf16 v{16+(i&1)}, v{XR+i}, v15, v{16+(i&1)}")
        P(f"v_lshlrev_b32 v{XF+2*i}, 16, v{XR+i}\nv_and_b32 v{XF+2*i+1}, s42, v{XR+i}")
    P("v_add_f32 v16, v16, v17")
    reduce8(P, 16, 17)
    P(f"v_mul_f32 v16, {f2u(-1.0/512):#x}, v16\nv_mov_b32 v17, v16")
    P("v_mov_b32 v18, 0\nv_mov_b32 v19, 0\nv_mov_b32 v20, 0\nv_mov_b32 v21, 0")
    for i in range(32):
        P(f"v_pk_add_f32 {vr(XF+2*i,2)}, {vr(XF+2*i,2)}, v[16:17]")
    for i in range(32):
        a = 18 + 2*(i&1)
        P(f"v_pk_fma_f32 {vr(a,2)}, {vr(XF+2*i,2)}, {vr(XF+2*i,2)}, {vr(a,2)}")
    P("v_add_f32 v18, v18, v19\nv_add_f32 v20, v20, v21\nv_add_f32 v18, v18, v20")
    reduce8(P, 18, 19)
    P(f"v_mov_b32 v19, {EPS5:#x}\nv_fmac_f32 v19, {f2u(1.0/512):#x}, v18\nv_rsq_f32 v18, v19\nv_mov_b32 v19, v18")
    for i in range(32):
        P(f"v_pk_mul_f32 {vr(XF+2*i,2)}, {vr(XF+2*i,2)}, v[18:19]")
    for i in range(32):
        P(f"v_cvt_pk_bf16_f32 v{XR+i}, v{XF+2*i}, v{XF+2*i+1}")
        if i % 4 == 3:
            c = i // 4
            P(f"ds_write_b128 v8, {vr(XR+4*c,4)} offset:{c*8192}")
    AQ, AK, AV = 24, 32, 40
    for r in range(24, 48): P(f"v_mov_b32 v{r}, 0")
    FX, FW = 96, 112
    P("s_waitcnt lgkmcnt(0)")
    vm = [9, 6, 6, 6, 6, 6, 3, 0]
    for i in range(8):
        P(f"s_waitcnt vmcnt({vm[i]})\ns_barrier")
        if 1 <= i <= 4: dma(i + 3)
        slot = i & 3
        wa = 13 if slot < 2 else 14
        so = (slot & 1) * 24576
        for ks in range(2):
            for tt in range(2):
                P(f"ds_read_b128 {vr(FX+ks*8+tt*4,4)}, v{9+ks} offset:{i*8192+tt*2048}")
            for m in (1, 2, 0):
                for s2 in range(2):
                    P(f"ds_read_b64_tr_b16 {vr(FW+ks*12+m*4+s2*2,2)}, v{wa} offset:{so+ks*12288+m*1024+s2*512}")
        for ks in range(2):
            P(f"s_waitcnt lgkmcnt({8 if ks == 0 else 0})")
            for tt in range(2):
                x = vr(FX+ks*8+tt*4, 4)
                P(f"v_mfma_f32_16x16x32_bf16 {vr(AK+tt*4,4)}, {x}, {vr(FW+ks*12+4,4)}, {vr(AK+tt*4,4)}")
                P(f"v_mfma_f32_16x16x32_bf16 {vr(AV+tt*4,4)}, {x}, {vr(FW+ks*12+8,4)}, {vr(AV+tt*4,4)}")
            for tt in range(2):
                x = vr(FX+ks*8+tt*4, 4)
                P(f"v_mfma_f32_16x16x32_bf16 {vr(AQ+tt*4,4)}, {vr(FW+ks*12,4)}, {x}, {vr(AQ+tt*4,4)}")
    P(f"s_lshl_b32 s30, s{sj}, 2\nv_mov_b32 v16, s30")
    P("global_load_dword v17, v16, s[20:21] sc0 sc1")
    P(f"s_mov_b32 s43, {LOG2E:#x}\ns_mov_b32 s44, {EPS6:#x}")
    phi(P, list(range(AK, AK+8)), list(range(64, 72)), 43, 44)
    for i in range(4):
        P(f"v_cvt_pk_bf16_f32 v{72+i}, v{AK+2*i}, v{AK+2*i+1}")
        P(f"v_cvt_pk_bf16_f32 v{76+i}, v{AV+2*i}, v{AV+2*i+1}")
        P(f"v_mov_b32 v{80+i}, v15")
    P("v_mfma_f32_16x16x32_bf16 v[84:87], v[76:79], v[72:75], 0")
    P("v_mfma_f32_16x16x32_bf16 v[88:91], v[80:83], v[72:75], 0")
    phi(P, list(range(AQ, AQ+8)), list(range(64, 72)), 43, 44)
    for i in range(4):
        P(f"v_cvt_pk_bf16_f32 v{72+i}, v{AQ+2*i}, v{AQ+2*i+1}")
    P("v_permlane16_swap_b32 v72, v74\nv_permlane16_swap_b32 v73, v75")
    P(f"s_lshl_b32 s30, s{stb}, 1\ns_add_u32 s30, s30, s{st}\ns_lshl_b32 s30, s30, 5\ns_lshl_b32 s31, s{sj}, 2\ns_add_u32 s30, s30, s31\ns_add_u32 s30, s30, s{sh}\ns_lshl_b32 s30, s30, 10\ns_add_u32 s30, s30, {WS_PQ}")
    P(f"v_lshlrev_b32 v18, 4, v1")
    P(f"buffer_store_dwordx4 v[72:75], v18, {sr(SWS,4)}, s30 offen")
    P("s_barrier")
    P(f"v_lshlrev_b32 v19, 2, v1\ns_mul_i32 s30, s{sw}, 1280\nv_add_u32 v20, s30, v19")
    for r in range(4): P(f"ds_write_b32 v20, v{84+r} offset:{r*256}")
    P(f"ds_write_b32 v20, v88 offset:1024")
    P(f"s_xor_b32 s31, s{sw}, 4\ns_mul_i32 s30, s31, 1280\ns_lshl_b32 s31, s{st}, 9\ns_add_u32 s30, s30, s31\nv_add_u32 v21, s30, v19")
    P("s_waitcnt lgkmcnt(0)\ns_barrier")
    P("ds_read_b32 v92, v21\nds_read_b32 v93, v21 offset:256\nds_read_b32 v94, v21 offset:1024")
    P(f"s_cmp_eq_u32 s{st}, 0\ns_cbranch_scc1 ka_t0\nv_mov_b32 v84, v86\nv_mov_b32 v85, v87\nka_t0:")
    P("ka_poll:")
    P("s_waitcnt vmcnt(0)")
    P("v_readfirstlane_b32 s30, v17\ns_cmp_lg_u32 s30, 0\ns_cbranch_scc1 ka_go")
    P("s_sleep 2\nglobal_load_dword v17, v16, s[20:21] sc0 sc1\ns_branch ka_poll")
    P("ka_go:")
    P("s_waitcnt lgkmcnt(0)")
    P("v_add_f32 v84, v84, v92\nv_add_f32 v85, v85, v93\nv_add_f32 v88, v88, v94")
    P(f"s_lshl_b32 s30, s{sj}, 2\ns_add_u32 s30, s30, s{sh}\ns_mul_i32 s30, s30, 1088\ns_lshl_b32 s31, s{st}, 9\ns_add_u32 s31, s31, s30")
    P(f"buffer_atomic_add_f32 v84, v19, {sr(SWS,4)}, s31 offen\nbuffer_atomic_add_f32 v85, v19, {sr(SWS,4)}, s31 offen offset:256")
    P(f"s_cmp_eq_u32 s{st}, 0\ns_cbranch_scc0 {name}_end\ns_mov_b64 exec, 0xffff")
    P(f"buffer_atomic_add_f32 v88, v19, {sr(SWS,4)}, s30 offen offset:1024")
    tail(P, name, 160)

def bd_ids(P, sw, stb, scb, stt, skq):
    P("v_and_b32 v1, 63, v0\nv_lshrrev_b32 v2, 6, v0")
    P(f"v_readfirstlane_b32 s{sw}, v2")
    P(f"s_and_b32 s3, s2, 7\ns_lshr_b32 s30, s2, 3\ns_lshr_b32 s31, s30, 3")
    P(f"s_lshl_b32 s{stb}, s3, 2\ns_add_u32 s{stb}, s{stb}, s31\ns_and_b32 s{scb}, s30, 7")
    P(f"s_lshr_b32 s{stt}, s{sw}, 2\ns_and_b32 s{skq}, s{sw}, 3")
    P(f"v_lshrrev_b32 v4, 3, v1\nv_and_b32 v5, 7, v1")

def bd_wdma_voff(P, dst, scb):
    P(f"v_bfe_u32 v7, v1, 4, 1\nv_lshlrev_b32 v7, 2, v7\nv_xor_b32 v7, v5, v7\nv_lshlrev_b32 v7, 4, v7")
    P(f"v_lshl_add_u32 v{dst}, v4, 10, v7\ns_lshl_b32 s30, s{scb}, 7\nv_add_u32 v{dst}, s30, v{dst}")

def bd_wfrag_addr(P, d0, d1):
    P(f"v_lshrrev_b32 v7, 5, v1\nv_lshlrev_b32 v{d0}, 9, v7")
    P(f"v_bfe_u32 v7, v1, 2, 2\nv_lshl_add_u32 v{d0}, v7, 7, v{d0}")
    P(f"v_bfe_u32 v7, v1, 3, 1\nv_lshl_add_u32 v{d0}, v7, 6, v{d0}")
    P(f"v_bfe_u32 v7, v1, 4, 1\nv_lshl_add_u32 v{d0}, v7, 5, v{d0}")
    P(f"v_and_b32 v7, 3, v1\nv_lshl_add_u32 v{d0}, v7, 3, v{d0}")

def bd_reduce(P, ACC, sw, stt, skq, R):
    P(f"v_lshrrev_b32 v7, 5, v1\nv_xor_b32 v7, v7, v5\nv_lshlrev_b32 v7, 4, v7\nv_and_b32 v8, 31, v1\nv_lshl_add_u32 v7, v8, 8, v7")
    P(f"s_lshl_b32 s30, s{skq}, 14\ns_lshl_b32 s31, s{stt}, 13\ns_add_u32 s30, s30, s31\nv_add_u32 v7, s30, v7")
    P("v_xor_b32 v8, 32, v7\nv_xor_b32 v9, 64, v7\nv_xor_b32 v10, 96, v7")
    P(f"v_lshlrev_b32 v11, 1, v5\nv_xor_b32 v11, v11, v4\nv_lshlrev_b32 v11, 4, v11\nv_lshl_add_u32 v11, v4, 8, v11\ns_lshl_b32 s30, s{sw}, 11\nv_add_u32 v11, s30, v11\nv_xor_b32 v12, 16, v11")
    P("s_barrier")
    for ct in range(2):
        for rq in range(4):
            P(f"ds_write_b128 v{7+rq}, {vr(ACC+ct*16+rq*4,4)} offset:{ct*128}")
    P("s_waitcnt lgkmcnt(0)\ns_barrier")
    for kq in range(4):
        P(f"ds_read_b128 {vr(R+kq*8,4)}, v11 offset:{kq*16384}")
        P(f"ds_read_b128 {vr(R+kq*8+4,4)}, v12 offset:{kq*16384}")
    P("s_waitcnt lgkmcnt(4)")
    for e in range(0, 8, 2): P(f"v_pk_add_f32 {vr(R+e,2)}, {vr(R+e,2)}, {vr(R+8+e,2)}")
    P("s_waitcnt lgkmcnt(0)")
    for e in range(0, 8, 2): P(f"v_pk_add_f32 {vr(R+16+e,2)}, {vr(R+16+e,2)}, {vr(R+24+e,2)}")
    for e in range(0, 8, 2): P(f"v_pk_add_f32 {vr(R+e,2)}, {vr(R+e,2)}, {vr(R+16+e,2)}")

def bd_hf_off(P, dst, sw, stb, scb, stt):
    P(f"v_lshrrev_b32 v7, 1, v5\nv_lshlrev_b32 v{dst}, 10, v7\nv_and_b32 v7, 1, v5\nv_lshl_add_u32 v{dst}, v7, 9, v{dst}\nv_lshl_add_u32 v{dst}, v4, 4, v{dst}")
    P(f"s_lshl_b32 s30, s{stb}, 1\ns_add_u32 s30, s30, s{stt}\ns_lshl_b32 s30, s30, 3\ns_add_u32 s30, s30, s{scb}\ns_lshl_b32 s30, s30, 12")
    P(f"s_and_b32 s31, s{sw}, 3\ns_lshl_b32 s31, s31, 7\ns_add_u32 s30, s30, s31\ns_add_u32 s30, s30, {WS_HF}\nv_add_u32 v{dst}, s30, v{dst}")

def bd_row_off(P, dst, sw, stb, scb):
    P(f"s_lshl_b32 s30, s{stb}, 6\ns_lshl_b32 s31, s{sw}, 3\ns_add_u32 s30, s30, s31\nv_add_u32 v{dst}, s30, v4\nv_lshlrev_b32 v{dst}, 10, v{dst}")
    P(f"v_lshl_add_u32 v{dst}, v5, 4, v{dst}\ns_lshl_b32 s30, s{scb}, 7\nv_add_u32 v{dst}, s30, v{dst}")

def add_resid_pack(P, R, RES, T, smask):
    for i in range(4):
        P(f"v_lshlrev_b32 v{T+2*i}, 16, v{RES+i}\nv_and_b32 v{T+2*i+1}, s{smask}, v{RES+i}")
    for e in range(0, 8, 2): P(f"v_pk_add_f32 {vr(R+e,2)}, {vr(R+e,2)}, {vr(T+e,2)}")
    for i in range(4): P(f"v_cvt_pk_bf16_f32 v{RES+i}, v{R+2*i}, v{R+2*i+1}")

def kernel_b(P):
    name = "kb_kernel"
    head(P, name)
    SX, SW, SWS = 8, 12, 16
    sw, stb, scb, stt, skq = 24, 25, 26, 27, 28
    P("s_load_dwordx2 s[4:5], s[0:1], 0\ns_load_dwordx2 s[6:7], s[0:1], 16\ns_load_dwordx2 s[22:23], s[0:1], 72")
    bd_ids(P, sw, stb, scb, stt, skq)
    bd_wdma_voff(P, 6, scb)
    P("v_lshlrev_b32 v3, 4, v1")
    bd_row_off(P, 16, sw, stb, scb)
    P("s_waitcnt lgkmcnt(0)")
    srd(P, SX, 4, 2048*1024); srd(P, SW, 6, 512*1024); srd(P, SWS, 22, WS_END)
    KVL = 65536
    P(f"s_lshl_b32 s30, s{sw}, 10\ns_add_u32 s31, s30, {KVL}")
    for i in range(4):
        P(f"s_add_u32 m0, s31, {i*8192}\ns_add_u32 s32, s30, {i*8192}")
        P(f"buffer_load_dwordx4 v3, {sr(SWS,4)}, s32 offen lds")
    P(f"s_cmp_lt_u32 s{sw}, 2\ns_cbranch_scc0 kb_skip")
    P(f"s_add_u32 m0, s31, 32768\ns_add_u32 s32, s30, 32768")
    P(f"buffer_load_dwordx4 v3, {sr(SWS,4)}, s32 offen lds")
    P("kb_skip:")
    PQ = 64
    P(f"s_lshl_b32 s30, s{stb}, 1\ns_add_u32 s30, s30, s{stt}\ns_lshl_b32 s30, s30, 2\ns_add_u32 s30, s30, s{skq}\ns_lshl_b32 s30, s30, 13\ns_add_u32 s30, s30, {WS_PQ}")
    P(f"s_add_u32 s31, s30, 4096")
    for hh in range(8):
        P(f"buffer_load_dwordx4 {vr(PQ+4*hh,4)}, v3, {sr(SWS,4)}, s{30+hh//4} offen offset:{(hh%4)*1024}")
    P(f"s_lshl_b32 s30, s{sw}, 16\ns_lshl_b32 s31, s{sw}, 13")
    for i in range(8):
        P(f"s_add_u32 m0, s31, {i*1024}\ns_add_u32 s32, s30, {i*8192}")
        P(f"buffer_load_dwordx4 v6, {sr(SW,4)}, s32 offen lds")
    RES = 20
    P(f"buffer_load_dwordx4 {vr(RES,4)}, v16, {sr(SX,4)}, 0 offen")
    bd_wfrag_addr(P, 13, 14)
    P(f"s_lshl_b32 s30, s{skq}, 14\nv_add_u32 v13, s30, v13\nv_xor_b32 v14, 64, v13")
    P(f"v_and_b32 v7, 3, v1\nv_lshlrev_b32 v7, 2, v7\nv_bfe_u32 v8, v1, 2, 2\nv_add_u32 v7, v7, v8")
    P(f"v_and_b32 v8, 16, v1\nv_cmp_eq_u32 vcc, 0, v8\nv_cndmask_b32 v7, 16, v7, vcc")
    P(f"v_lshlrev_b32 v15, 6, v7\nv_lshrrev_b32 v7, 5, v1\nv_lshl_add_u32 v15, v7, 5, v15\ns_mul_i32 s30, s{skq}, 8704\ns_add_u32 s30, s30, {KVL}\nv_add_u32 v15, s30, v15")
    bd_hf_off(P, 17, sw, stb, scb, stt)
    ACC = 32
    for r in range(32): P(f"v_mov_b32 v{ACC+r}, 0")
    P(f"s_mov_b32 s44, {EPS6:#x}\ns_mov_b32 s42, 0xffff0000")
    P("s_waitcnt vmcnt(17)\ns_barrier")
    KF = 96
    for hh in range(8):
        P(f"ds_read_b128 {vr(KF+8*hh,4)}, v15 offset:{hh*1088}")
        P(f"ds_read_b128 {vr(KF+8*hh+4,4)}, v15 offset:{hh*1088+16}")
    D1 = 160
    O = 192
    for hh in range(8):
        P(f"s_waitcnt lgkmcnt({14-2*hh})")
        for i in range(4):
            P(f"v_cvt_pk_bf16_f32 v{KF+8*hh+i}, v{KF+8*hh+2*i}, v{KF+8*hh+2*i+1}")
    P("s_waitcnt vmcnt(9)")
    def s1(hh):
        d = D1 + 16*(hh & 1)
        P(f"v_mfma_f32_32x32x16_bf16 {vr(d,16)}, {vr(KF+8*hh,4)}, {vr(PQ+4*hh,4)}, 0")
    def s1post(hh):
        d = D1 + 16*(hh & 1)
        P(f"v_add_f32 v{d+8}, s44, v{d+8}\nv_rcp_f32 v{d+8}, v{d+8}\nv_mov_b32 v{d+9}, v{d+8}")
        for e in range(0, 8, 2): P(f"v_pk_mul_f32 {vr(d+e,2)}, {vr(d+e,2)}, {vr(d+8,2)}")
        for i in range(4): P(f"v_cvt_pk_bf16_f32 v{O+4*hh+i}, v{d+2*i}, v{d+2*i+1}")
    s1(0)
    for hh in range(8):
        if hh < 7: s1(hh+1)
        s1post(hh)
    P("s_waitcnt vmcnt(1)\ns_barrier")
    WF = 96
    for half in range(2):
        for hq in range(4):
            hh = half*4 + hq
            for ct in range(2):
                for s2 in range(2):
                    P(f"ds_read_b64_tr_b16 {vr(WF+hh*8+ct*4+s2*2,2)}, v{13+ct} offset:{hh*2048+s2*1024}")
        for hq in range(4):
            hh = half*4 + hq
            P(f"s_waitcnt lgkmcnt({12-4*hq})")
            for ct in range(2):
                P(f"v_mfma_f32_32x32x16_bf16 {vr(ACC+16*ct,16)}, {vr(WF+hh*8+ct*4,4)}, {vr(O+4*hh,4)}, {vr(ACC+16*ct,16)}")
    R = 64
    bd_reduce(P, ACC, sw, stt, skq, R)
    P("s_waitcnt vmcnt(0)")
    add_resid_pack(P, R, RES, 96, 42)
    P(f"buffer_store_dwordx4 {vr(RES,4)}, v17, {sr(SWS,4)}, 0 offen")
    T = 96
    for i in range(4):
        P(f"v_lshlrev_b32 v{T+2*i}, 16, v{RES+i}\nv_and_b32 v{T+2*i+1}, s42, v{RES+i}")
    P(f"v_pk_add_f32 v[104:105], {vr(T,2)}, {vr(T+2,2)}\nv_pk_add_f32 v[106:107], {vr(T+4,2)}, {vr(T+6,2)}\nv_pk_add_f32 v[104:105], v[104:105], v[106:107]\nv_add_f32 v104, v104, v105")
    reduce8(P, 104, 0)
    P(f"v_mul_f32 v104, {f2u(1.0/64):#x}, v104\nv_mov_b32 v105, 0")
    for e in range(8):
        P(f"v_sub_f32 v{T+e}, v{T+e}, v104")
    for e in range(8):
        P(f"v_fmac_f32 v105, v{T+e}, v{T+e}")
    reduce8(P, 105, 0)
    P(f"s_lshl_b32 s30, s{stb}, 6\ns_lshl_b32 s31, s{sw}, 3\ns_add_u32 s30, s30, s31\nv_add_u32 v7, s30, v4\nv_lshlrev_b32 v7, 6, v7")
    P(f"s_lshl_b32 s30, s{scb}, 3\ns_add_u32 s30, s30, {WS_STATS}")
    P(f"v_cmp_eq_u32 vcc, 0, v5\ns_and_b64 exec, exec, vcc")
    P(f"buffer_store_dwordx2 v[104:105], v7, {sr(SWS,4)}, s30 offen")
    tail(P, name, 224)

def kernel_c(P):
    name = "kc_kernel"
    head(P, name)
    SG, SU, SWS = 8, 12, 16
    sw, srb, sfs, stg, shf = 24, 25, 26, 27, 28
    P("s_load_dwordx4 s[4:7], s[0:1], 32\ns_load_dwordx2 s[22:23], s[0:1], 72")
    P("v_and_b32 v1, 63, v0\nv_lshrrev_b32 v2, 6, v0")
    P(f"v_readfirstlane_b32 s{sw}, v2")
    P(f"s_and_b32 s3, s2, 7\ns_lshr_b32 s30, s2, 3\ns_lshr_b32 s31, s30, 4")
    P(f"s_lshl_b32 s{srb}, s3, 1\ns_add_u32 s{srb}, s{srb}, s31\ns_and_b32 s{sfs}, s30, 15")
    P(f"s_and_b32 s{stg}, s{sw}, 3\ns_lshr_b32 s{shf}, s{sw}, 2")
    P(f"s_lshl_b32 s31, s31, 2\ns_add_u32 s31, s31, s{sfs}")
    for i in range(8):
        P(f"s_add_u32 s{32+i}, s31, {i}\ns_and_b32 s{32+i}, s{32+i}, 7")
    P(f"v_mul_u32_u24 v4, 4682, v1\nv_lshrrev_b32 v4, 16, v4")
    P(f"v_mul_u32_u24 v5, 14, v4\nv_sub_u32 v5, v1, v5")
    P(f"s_lshl_b32 s30, s{sw}, 3\nv_add_u32 v6, s30, v4\nv_mul_u32_u24 v6, 3584, v6\nv_lshl_add_u32 v6, v5, 4, v6\ns_mul_i32 s30, s{sfs}, 224\nv_add_u32 v6, s30, v6\nv_add_u32 v7, {4*3584}, v6")
    P("v_lshlrev_b32 v3, 4, v1")
    P(f"v_and_b32 v8, 31, v1\ns_lshl_b32 s30, s{srb}, 2\ns_add_u32 s40, s30, s{stg}\ns_lshl_b32 s30, s40, 5\nv_add_u32 v8, s30, v8\nv_lshlrev_b32 v8, 6, v8\nv_lshrrev_b32 v9, 5, v1\nv_lshl_add_u32 v8, v9, 5, v8")
    SLOT, UPO, NS = 28928, 14464, 5
    CSL = NS * SLOT
    P(f"v_mov_b32 v10, 0\nv_mov_b32 v11, 0\nv_mov_b32 v12, 0\nv_mov_b32 v13, 0\nv_add_u32 v14, {CSL}, v3\nds_write_b128 v14, v[10:13]")
    P("s_waitcnt lgkmcnt(0)")
    srd(P, SG, 4, 512*3584); srd(P, SU, 6, 512*3584); srd(P, SWS, 22, WS_END)
    ST = 16
    P(f"s_mov_b32 s30, {WS_STATS}")
    P(f"buffer_load_dwordx4 {vr(ST,4)}, v8, {sr(SWS,4)}, s30 offen\nbuffer_load_dwordx4 {vr(ST+4,4)}, v8, {sr(SWS,4)}, s30 offen offset:16")
    H = 128
    P(f"s_lshl_b32 s41, s40, 15\ns_add_u32 s41, s41, {WS_HF}")
    P(f"s_mul_i32 s42, s{sw}, {8*224}")
    def hload(i):
        P(f"s_lshl_b32 s30, s{32+i}, 12\ns_add_u32 s30, s30, s41")
        for ks in range(4):
            P(f"buffer_load_dwordx4 {vr(H+16*i+4*ks,4)}, v3, {sr(SWS,4)}, s30 offen offset:{ks*1024}")
    def dma(i):
        slot = i % NS
        P(f"s_mul_i32 s30, s{32+i}, {64*3584}\ns_mov_b32 exec_hi, 0x00ffffff")
        for m in range(2):
            for hf in range(2):
                P(f"s_add_u32 m0, s42, {slot*SLOT + m*UPO + hf*896}")
                P(f"buffer_load_dwordx4 v{6+hf}, {sr(SG if m == 0 else SU,4)}, s30 offen lds")
        P("s_mov_b64 exec, -1")
    for i in range(NS):
        hload(i); dma(i)
    for i in range(NS, 8): hload(i)
    P(f"v_bfe_u32 v10, v1, 4, 1\nv_mul_u32_u24 v10, {UPO}, v10\nv_bfe_u32 v11, v1, 2, 2\nv_lshl_add_u32 v11, v9, 3, v11\nv_mul_u32_u24 v11, 224, v11\nv_add_u32 v10, v10, v11")
    P(f"v_and_b32 v11, 3, v1\nv_lshl_add_u32 v10, v11, 3, v10\ns_lshl_b32 s30, s{shf}, 7\nv_add_u32 v10, s30, v10")
    P(f"v_add_u32 v11, {2*SLOT}, v10\nv_add_u32 v12, {4*SLOT}, v10")
    ACC = 32
    CS = 24
    for r in range(64): P(f"v_mov_b32 v{ACC+r}, 0")
    for r in range(4): P(f"v_mov_b32 v{CS+r}, 0")
    P("v_mov_b32 v15, 0x3f803f80")
    WF = 96
    vm = [44, 36, 32, 28, 24, 8, 4, 0]
    for i in range(8):
        P(f"s_waitcnt vmcnt({vm[i]})\ns_barrier")
        if 1 <= i <= 3: dma(i + 4)
        slot = i % NS
        wa = 10 + slot // 2
        so = (slot & 1) * SLOT
        def rd(ks):
            b = WF + 16*(ks & 1)
            for ft in range(4):
                for s2 in range(2):
                    P(f"ds_read_b64_tr_b16 {vr(b+ft*4+s2*2,2)}, v{wa} offset:{so+ks*3584+s2*896+ft*32}")
        rd(0)
        for ks in range(4):
            if ks < 3: rd(ks+1)
            P(f"s_waitcnt lgkmcnt({8 if ks < 3 else 0})")
            b = WF + 16*(ks & 1)
            for ft in range(3):
                P(f"v_mfma_f32_32x32x16_bf16 {vr(ACC+16*ft,16)}, {vr(b+4*ft,4)}, {vr(H+16*i+4*ks,4)}, {vr(ACC+16*ft,16)}")
            P(f"s_cmp_eq_u32 s{shf}, 0\ns_cbranch_scc0 kc_s4_{i}_{ks}")
            P(f"v_mfma_f32_32x32x16_bf16 {vr(ACC+48,16)}, {vr(b+12,4)}, {vr(H+16*i+4*ks,4)}, {vr(ACC+48,16)}")
            P(f"kc_s4_{i}_{ks}:")
            P(f"s_cmp_eq_u32 s{stg}, {ks}\ns_cbranch_scc0 kc_sd_{i}_{ks}")
            for j in range(4):
                for ft in range(4):
                    P(f"v_dot2_f32_bf16 v{CS+ft}, v{b+4*ft+j}, v15, v{CS+ft}")
            P(f"kc_sd_{i}_{ks}:")
    P(f"v_and_b32 v13, 31, v1\nv_lshlrev_b32 v13, 2, v13\ns_lshl_b32 s30, s{shf}, 9\ns_add_u32 s30, s30, {CSL}\nv_add_u32 v13, s30, v13")
    for ft in range(4): P(f"ds_add_f32 v13, v{CS+ft} offset:{ft*128}")
    P(f"v_add_f32 v28, v{ST}, v{ST+2}\nv_add_f32 v29, v{ST+4}, v{ST+6}\nv_add_f32 v28, v28, v29\nv_mov_b32 v29, v28")
    P("v_permlane32_swap_b32 v28, v29\nv_add_f32 v28, v28, v29\nv_mul_f32 v28, 0x3e000000, v28")
    P(f"v_add_f32 v29, v{ST+1}, v{ST+3}\nv_add_f32 v30, v{ST+5}, v{ST+7}\nv_add_f32 v29, v29, v30\nv_mov_b32 v30, 0")
    for t in range(4):
        P(f"v_sub_f32 v{ST+2*t}, v{ST+2*t}, v28\nv_fmac_f32 v30, v{ST+2*t}, v{ST+2*t}")
    P(f"v_fmac_f32 v29, {f2u(64.0):#x}, v30\nv_mov_b32 v30, v29\nv_permlane32_swap_b32 v29, v30\nv_add_f32 v29, v29, v30")
    P(f"v_mov_b32 v30, {EPS5:#x}\nv_fmac_f32 v30, {f2u(1.0/512):#x}, v29\nv_rsq_f32 v29, v30")
    P(f"v_mul_f32 v28, v28, v29\nv_sub_f32 v28, 0, v28")
    P("s_waitcnt lgkmcnt(0)\ns_barrier")
    P(f"v_lshlrev_b32 v13, 4, v9\nv_add_u32 v13, s30, v13")
    c0 = -2.0 * 0.7978845608028654 * 1.4426950408889634
    P(f"s_mov_b32 s43, {f2u(c0):#x}\ns_mov_b32 s44, {f2u(c0*0.044715):#x}\nv_mov_b32 v14, s43")
    P(f"s_mul_i32 s30, s40, 112\ns_mul_i32 s31, s{sfs}, 7\ns_add_u32 s30, s30, s31\ns_lshl_b32 s31, s{shf}, 2\ns_add_u32 s30, s30, s31\ns_lshl_b32 s30, s30, 10\ns_add_u32 s30, s30, {WS_AF}")
    CV = 128
    for ft in range(4):
        for rq in range(4):
            P(f"ds_read_b128 {vr(CV+16*ft+4*rq,4)}, v13 offset:{ft*128+rq*32}")
    T = 192
    for ft in range(4):
        if ft == 3:
            P(f"s_cmp_eq_u32 s{shf}, 0\ns_cbranch_scc0 {name}_end")
        P(f"s_waitcnt lgkmcnt({12-4*ft})")
        a = ACC + 16*ft; cv = CV + 16*ft
        for r in range(16): P(f"v_mul_f32 v{cv+r}, v28, v{cv+r}")
        for r in range(16): P(f"v_fmac_f32 v{cv+r}, v29, v{a+r}")
        for r in range(8): P(f"v_mul_f32 v{T+r}, v{cv+r}, v{cv+r}")
        for r in range(8): P(f"v_fma_f32 v{T+r}, v{T+r}, s44, v14")
        for r in range(8): P(f"v_mul_f32 v{T+r}, v{T+r}, v{cv+r}")
        for r in range(8): P(f"v_exp_f32 v{T+r}, v{T+r}")
        for r in range(8): P(f"v_mul_f32 v{cv+r}, v{cv+r}, v{cv+8+r}")
        for r in range(8): P(f"v_add_f32 v{T+r}, 1.0, v{T+r}")
        for r in range(8): P(f"v_rcp_f32 v{T+r}, v{T+r}")
        for r in range(8): P(f"v_mul_f32 v{cv+r}, v{cv+r}, v{T+r}")
        for i in range(4): P(f"v_cvt_pk_bf16_f32 v{cv+8+i}, v{cv+2*i}, v{cv+2*i+1}")
        P(f"buffer_store_dwordx4 {vr(cv+8,4)}, v3, {sr(SWS,4)}, s30 offen offset:{ft*1024}")
    tail(P, name, 256)

def kernel_d(P):
    name = "kd_kernel"
    head(P, name)
    SO, SW, SWS = 8, 12, 16
    sw, stb, scb, stt, skq = 24, 25, 26, 27, 28
    P("s_load_dwordx4 s[4:7], s[0:1], 48\ns_load_dwordx2 s[22:23], s[0:1], 72")
    bd_ids(P, sw, stb, scb, stt, skq)
    P(f"s_lshl_b32 s31, s31, 1\ns_add_u32 s31, s31, s{scb}")
    P("s_cmp_ge_u32 s31, 7\ns_cselect_b32 s30, 7, 0\ns_sub_u32 s31, s31, s30")
    for i in range(7):
        P(f"s_add_u32 s{32+i}, s31, {i}\ns_cmp_ge_u32 s{32+i}, 7\ns_cselect_b32 s30, 7, 0\ns_sub_u32 s{32+i}, s{32+i}, s30")
    bd_wdma_voff(P, 6, scb)
    P("v_lshlrev_b32 v3, 4, v1")
    bd_row_off(P, 16, sw, stb, scb)
    bd_hf_off(P, 17, sw, stb, scb, stt)
    P("s_waitcnt lgkmcnt(0)")
    srd(P, SW, 4, 1792*1024); srd(P, SO, 6, 2048*1024); srd(P, SWS, 22, WS_END)
    AFR = 128
    P(f"s_lshl_b32 s30, s{stb}, 1\ns_add_u32 s30, s30, s{stt}\ns_mul_i32 s41, s30, 112\ns_mul_i32 s30, s{skq}, 28\ns_add_u32 s41, s41, s30\ns_lshl_b32 s41, s41, 10\ns_add_u32 s41, s41, {WS_AF}")
    P(f"s_mul_i32 s42, s{skq}, {448*1024}\ns_lshl_b32 s30, s{stt}, 15\ns_add_u32 s42, s42, s30")
    P(f"s_lshl_b32 s43, s{skq}, 13\ns_lshl_b32 s30, s{stt}, 12\ns_add_u32 s43, s43, s30")
    NS = 4
    def aload(i):
        P(f"s_lshl_b32 s30, s{32+i}, 12\ns_add_u32 s30, s30, s41")
        for ks in range(4):
            P(f"buffer_load_dwordx4 {vr(AFR+16*i+4*ks,4)}, v3, {sr(SWS,4)}, s30 offen offset:{ks*1024}")
    def dma(i):
        slot = i % NS
        P(f"s_lshl_b32 s30, s{32+i}, 16\ns_add_u32 s30, s30, s42")
        for q in range(4):
            P(f"s_add_u32 m0, s43, {slot*32768+q*1024}\ns_add_u32 s31, s30, {q*8192}")
            P(f"buffer_load_dwordx4 v6, {sr(SW,4)}, s31 offen lds")
    RES = 20
    P(f"buffer_load_dwordx4 {vr(RES,4)}, v17, {sr(SWS,4)}, 0 offen")
    for i in range(NS):
        aload(i); dma(i)
    for i in range(NS, 7): aload(i)
    bd_wfrag_addr(P, 13, 14)
    P(f"s_lshl_b32 s30, s{skq}, 13\nv_add_u32 v13, s30, v13\nv_xor_b32 v14, 64, v13\nv_add_u32 v18, 65536, v13\nv_add_u32 v19, 65536, v14")
    ACC = 32
    for r in range(32): P(f"v_mov_b32 v{ACC+r}, 0")
    P(f"s_mov_b32 s44, 0xffff0000")
    WF = 64
    vm = [36, 28, 24, 20, 8, 4, 0]
    for i in range(7):
        P(f"s_waitcnt vmcnt({vm[i]})\ns_barrier")
        if 1 <= i <= 3: dma(i + 3)
        slot = i % NS
        wa = (13, 14) if slot < 2 else (18, 19)
        so = (slot & 1) * 32768
        for ks in range(4):
            for ct in range(2):
                for s2 in range(2):
                    P(f"ds_read_b64_tr_b16 {vr(WF+ks*8+ct*4+s2*2,2)}, v{wa[ct]} offset:{so+ks*2048+s2*1024}")
        for ks in range(4):
            P(f"s_waitcnt lgkmcnt({12-4*ks})")
            for ct in range(2):
                P(f"v_mfma_f32_32x32x16_bf16 {vr(ACC+16*ct,16)}, {vr(WF+ks*8+ct*4,4)}, {vr(AFR+16*i+4*ks,4)}, {vr(ACC+16*ct,16)}")
    R = 64
    bd_reduce(P, ACC, sw, stt, skq, R)
    add_resid_pack(P, R, RES, 96, 44)
    P(f"buffer_store_dwordx4 {vr(RES,4)}, v16, {sr(SO,4)}, 0 offen")
    tail(P, name, 240)

def main(out):
    P = Prog()
    hdr = open("cdna_kernels/%s.s.ref" % NAME).read().split("; Override")[0]
    P.raw(hdr.rstrip())
    for k in ("ka", "kb", "kc", "kd"):
        P.raw(f"; @launch kernel={k}_kernel grid=(256,1,1) block=(512,1,1) lds=163840")
    P.raw('.amdgcn_target "amdgcn-amd-amdhsa--gfx950"')
    kernel_a(P); kernel_b(P); kernel_c(P); kernel_d(P)
    open(out, "w").write(P.finalize())

if __name__ == "__main__":
    main(sys.argv[1] if len(sys.argv) > 1 else "cdna_kernels/%s.s" % NAME)
```

```python
import re

REG_RE = re.compile(r"\b([vsa])\[(\d+):(\d+)\]|\b([vsa])(\d+)\b|\b(vcc|exec|m0|scc)\b|\b(vcc_lo|vcc_hi|exec_lo|exec_hi)\b")

def regs_of(op):
    out = []
    for m in REG_RE.finditer(op):
        if m.group(1):
            out += [(m.group(1), i) for i in range(int(m.group(2)), int(m.group(3)) + 1)]
        elif m.group(4):
            out.append((m.group(4), int(m.group(5))))
        elif m.group(6):
            out.append((m.group(6), 0))
        else:
            out.append((m.group(7)[:-3], 0))
    return out

TRANS = ("v_exp_f32", "v_log_f32", "v_rcp_f32", "v_rsq_f32", "v_sqrt_f32", "v_sin_f32", "v_cos_f32", "v_rcp_iflag_f32")

class Inst:
    def __init__(self, text):
        self.text = text
        t = text.split(";")[0].strip()
        parts = t.split(None, 1)
        self.mn = parts[0]
        rest = parts[1] if len(parts) > 1 else ""
        ops, cur, depth = [], "", 0
        for ch in rest:
            if ch in "[(": depth += 1
            if ch in "])": depth -= 1
            if ch == "," and depth == 0:
                ops.append(cur.strip()); cur = ""
            else:
                cur += ch
        if cur.strip(): ops.append(cur.strip())
        self.ops = ops
        mn = self.mn
        self.is_mfma = mn.startswith("v_mfma")
        self.is_valu = mn.startswith("v_") and not self.is_mfma
        self.is_salu = mn.startswith("s_")
        self.is_vmem = mn.startswith(("buffer_", "global_", "flat_", "scratch_"))
        self.is_ds = mn.startswith("ds_")
        self.is_trans = mn.replace("_e32", "").replace("_e64", "") in TRANS
        self.is_dot = mn.startswith("v_dot")
        self.is_dpp = ("_dpp" in mn) or any(k in rest for k in ("quad_perm", "row_shr", "row_shl", "row_ror", "row_bcast", "row_mirror", "row_half_mirror", "row_newbcast"))
        self.is_permlane = mn.startswith("v_permlane")
        self.is_lane = mn.startswith(("v_readlane", "v_readfirstlane", "v_writelane"))
        self.is_ldsdma = self.is_vmem and (" lds" in (" " + rest) or "_lds_" in mn)
        self.passes = 0
        if self.is_mfma:
            self.passes = 8 if "32x32" in mn else 4
        R = [regs_of(o) for o in ops]
        w, r = [], []
        self.srcC = []
        self.store_data = []
        if self.is_mfma:
            w = R[0]; r = R[1] + R[2] + R[3]; self.srcC = R[3]; self.srcAB = R[1] + R[2]
        elif self.is_valu:
            if mn.startswith("v_cmp"):
                w = R[0]; r = sum(R[1:], [])
                if mn.startswith("v_cmpx"): w = w + [("exec", 0)]
            elif mn.startswith(("v_add_co", "v_sub_co", "v_addc_co", "v_subb_co", "v_subrev_co", "v_div_scale", "v_mad_u64")):
                w = R[0] + R[1]; r = sum(R[2:], [])
            elif self.is_permlane and "swap" in mn:
                w = R[0] + R[1]; r = R[0] + R[1]
            elif mn.startswith(("v_fmac", "v_dot2c", "v_pk_fmac", "v_writelane")) or self.is_dpp:
                w = R[0]; r = sum(R, [])
            elif mn.startswith("v_nop"):
                pass
            else:
                w = R[0]; r = sum(R[1:], [])
                if mn.startswith("v_cndmask") and len(ops) == 3: r = r + [("vcc", 0)]
        elif self.is_vmem:
            if self.is_ldsdma:
                r = sum(R, []) + [("m0", 0)]
            elif "store" in mn:
                r = sum(R, [])
                self.store_data = R[0] if mn.startswith("buffer") else R[1]
            elif "atomic" in mn:
                r = sum(R, [])
                if " sc0" in (" " + rest):
                    w = R[0]
            elif "load" in mn:
                w = R[0]; r = sum(R[1:], [])
        elif self.is_ds:
            if mn.startswith(("ds_read", "ds_bpermute", "ds_permute", "ds_swizzle")) or "_rtn" in mn:
                w = R[0]; r = sum(R[1:], [])
            else:
                r = sum(R, [])
        elif self.is_salu:
            if mn.startswith(("s_cmp", "s_cbranch", "s_branch", "s_waitcnt", "s_barrier", "s_nop", "s_endpgm", "s_sleep", "s_setprio", "s_bitcmp")):
                r = sum(R, [])
            else:
                w = R[0] if R else []; r = sum(R[1:], [])
                if "saveexec" in mn: w = w + [("exec", 0)]
        self.w = set(w); self.r = set(r)
        self.wide_store = self.is_vmem and ("x3" in mn or "x4" in mn) and "store" in mn
        self.states = 1
        if mn == "s_nop":
            self.states = int(ops[0], 0) + 1

def need(p, c):
    n = 0
    vw = {x for x in p.w if x[0] in "va"}
    sw = {x for x in p.w if x[0] not in "va" or x[0] == "vcc"}
    sw = {x for x in p.w if x[0] in ("s", "vcc")}
    if p.is_mfma:
        tbl = {4: (6, 8), 8: (10, 12)}[p.passes]
        if c.is_mfma:
            if set(c.srcAB) & vw: n = max(n, tbl[1])
            if set(c.srcC) & vw:
                if not (set(c.srcC) == vw and c.passes == p.passes): n = max(n, tbl[0])
            elif c.w & vw:
                n = max(n, tbl[1])
        elif (c.r | c.w) & vw:
            n = max(n, tbl[1])
        if c.is_valu and (c.w & set(p.srcC)):
            n = max(n, {4: 3, 8: 7}[p.passes])
        if (c.is_ds or c.is_vmem) and (c.w & set(p.srcC)):
            n = max(n, {4: 3, 8: 7}[p.passes])
    if p.is_valu:
        if c.is_mfma and (c.r & vw): n = max(n, 3 if p.is_dot else 2)
        if p.is_dot:
            if c.is_dot and c.mn == p.mn:
                srcs = set(sum([regs_of(o) for o in c.ops[1:3]], []))
                if srcs & vw: n = max(n, 3)
            elif (c.r | c.w) & vw: n = max(n, 3)
        if p.is_trans and c.is_valu and not c.is_trans and (c.r & vw): n = max(n, 1)
        if p.is_trans and (c.is_mfma or c.is_vmem or c.is_ds) and (c.r & vw): n = max(n, 2)
        if c.is_valu and c.is_dpp and (c.r & vw): n = max(n, 2)
        if c.is_permlane and (c.r & vw): n = max(n, 2)
        if c.is_lane and (c.r & vw): n = max(n, 1)
        if sw:
            if c.is_valu and (c.r & sw): n = max(n, 4 if c.is_lane else 2)
            if c.is_vmem and (c.r & sw): n = max(n, 5)
            if c.is_salu and (c.r & sw): n = max(n, 1)
            if c.mn.startswith("s_cbranch_vcc") and ("vcc", 0) in sw: n = max(n, 1)
        if ("exec", 0) in p.w:
            if c.is_dpp: n = max(n, 5)
            if c.is_mfma or c.is_permlane or c.is_lane: n = max(n, 4)
        if "sdwa" in p.mn or "op_sel" in p.text:
            if c.is_valu and ((c.r | c.w) & vw): n = max(n, 1)
    if p.is_salu and ("m0", 0) in p.w and c.is_ldsdma: n = max(n, 1)
    if p.wide_store and (c.w & set(p.store_data)): n = max(n, 2)
    return n

SOPP = ("s_nop", "s_waitcnt", "s_barrier", "s_branch", "s_cbranch", "s_endpgm", "s_sleep", "s_setprio")
def est_size(i):
    mn = i.mn
    if mn.startswith(SOPP): return 4
    if mn.startswith(("s_load", "s_mem")): return 8
    if mn.startswith("s_"):
        for o in i.ops:
            try:
                v = int(o, 0)
                if v < -16 or v > 64: return 8
            except ValueError: pass
        return 4
    return 8

class Prog:
    def __init__(self):
        self.stride = 248
        self.items = []
    def __call__(self, text):
        for line in text.split("\n"):
            s = line.strip()
            if not s or s.startswith(";"):
                if s: self.items.append(("r", "    " + s))
                continue
            if s.endswith(":") and " " not in s:
                self.items.append(("l", s[:-1]))
            elif s.startswith("."):
                self.items.append(("r", s))
            else:
                self.items.append(("i", Inst(s)))
    def raw(self, text):
        self.items.append(("r", text))
    def mark(self, name):
        self.items.append(("m", name))
    def finalize(self):
        MAXH = 24
        pad = {}
        label_in = {}
        for sweep in range(3):
            hist = []
            def merge(a, b):
                d = {}
                for inst, age in a + b:
                    k = id(inst)
                    if k not in d or age < d[k][1]: d[k] = [inst, age]
                return list(d.values())
            for idx, (kind, it) in enumerate(self.items):
                if kind == "l":
                    hist = merge(hist, label_in.get(it, []))
                elif kind == "i":
                    req = 0
                    for p, age in hist:
                        req = max(req, need(p, it) - age)
                    req = max(req, pad.get(idx, 0))
                    pad[idx] = req
                    adv = req + it.states
                    hist = [[p, age + adv] for p, age in hist if age + adv < MAXH]
                    hist.append([it, 0])
                    if it.mn.startswith(("s_cbranch", "s_branch")):
                        tgt = it.ops[0]
                        label_in[tgt] = merge(label_in.get(tgt, []), [[p, a] for p, a in hist])
                        if it.mn == "s_branch": hist = []
                    if it.mn == "s_endpgm": hist = []
        out = []
        nn = 0
        region = None; since = 0; pads = {}
        for idx, (kind, it) in enumerate(self.items):
            if kind == "l": out.append(it + ":")
            elif kind == "r": out.append(it)
            elif kind == "m":
                region = it; since = 1 << 20
                if it is not None: pads.setdefault(it, [])
            else:
                r = pad.get(idx, 0)
                sz = est_size(it) + 4 * ((r + 15) // 16)
                if region is not None and since + sz > self.stride:
                    pads[region].append(len(out)); out.append(None); since = 4
                    r -= 1
                since += sz
                while r > 0:
                    k = min(r, 16)
                    out.append(f"    s_nop {k-1}")
                    r -= k; nn += 1
                out.append("    " + it.text)
        for reg, pl in pads.items():
            n = len(pl)
            starts = [min(w * n // 8, n - 1) for w in range(8)]
            for i, pos in enumerate(pl):
                lab = "".join(f"WU_{reg}_{w}:\n" for w in range(8) if starts[w] == i)
                nxt = f"WB_{reg}" if (i + 1 == n or (i + 1) in starts) else f"WP_{reg}_{i+1}"
                out[pos] = f"{lab}WP_{reg}_{i}:\n    s_cbranch_execz {nxt}"
        self.npads = {k: len(v) for k, v in pads.items()}
        self.nnops = nn
        return "\n".join(out) + "\n"
```

```python
import sys, struct
from asmkit import Prog

NAME = "sequential_preLN__linear_attn_block__geglu_ffn__prompt"
WS_KVZ, WS_CNT, WS_REL, WS_FB, WS_FC = 0, 0x9000, 0x9400, 0x10000, 0x18000
WS_PQ, WS_HF, WS_AF, WS_STAMP, WS_END = 0x100000, 0x300000, 0x500000, 0xD00000, 0xE00000
LOG2E, EPS6, EPS5 = 0x3fb8aa3b, 0x358637bd, 0x3727c5ac
U = 16384
SPIN = 1 << 22

def f2u(x): return struct.unpack("<I", struct.pack("<f", x))[0]
def vr(a, n): return f"v[{a}:{a+n-1}]"
def sr(a, n=4): return f"s[{a}:{a+n-1}]"

class Ctr:
    def __init__(self, P, name, maxv):
        self.P, self.name, self.maxv, self.n, self.last, self.done = P, name, maxv, 0, {}, 0
    def op(self, tag, text):
        self.P(text); self.n += 1; self.last[tag] = self.n
    def wait(self, tag):
        k = self.last[tag]
        if k <= self.done: return
        c = min(self.n - k, self.maxv)
        self.P(f"s_waitcnt {self.name}({c})")
        self.done = self.n - c
    def all(self, force=False):
        if self.done < self.n or force: self.P(f"s_waitcnt {self.name}(0)")
        self.done = self.n

OPT = dict(stamps=False, warm=True)

def gen(out):
    P = Prog()
    hdr = open("cdna_kernels/%s.s.ref" % NAME).read().split("; Override")[0]
    P.raw(hdr.rstrip())
    P.raw("; @launch grid=(256,1,1) block=(512,1,1) lds=163840")
    P.raw('.amdgcn_target "amdgcn-amd-amdhsa--gfx950"')
    kn = NAME + "_kernel"
    P.raw(f".text\n.globl {kn}\n.p2align 8\n.type {kn},@function")
    P(f"{kn}:")
    VM = Ctr(P, "vmcnt", 63); LG = Ctr(P, "lgkmcnt", 15)
    nst = [0]
    def stamp():
        if OPT["stamps"]:
            n = nst[0]; nst[0] += 1
            P(f"s_mem{'time' if OPT.get('clk') else 'realtime'} s[100:101]"); LG.all(True); P(f"s_mov_b32 s{70+n}, s100")
    def srd(d, b, nbytes):
        P(f"s_mov_b32 s{d}, s{b}\ns_mov_b32 s{d+1}, s{b+1}\ns_mov_b32 s{d+2}, {nbytes}\ns_mov_b32 s{d+3}, 0x20000")
    def warm(reg):
        if not OPT["warm"]: return
        P("s_mov_b64 exec, 0")
        for w in range(7): P(f"s_cmp_eq_u32 s{sw}, {w}\ns_cbranch_scc1 WU_{reg}_{w}")
        P(f"s_branch WU_{reg}_7")
        P(f"WB_{reg}:\ns_mov_b64 exec, -1")
    def mark(r):
        if OPT["warm"]: P.mark(r)
    SX, SQ, SO, SC, SD, SOUT, SWS = 4, 8, 12, 16, 20, 24, 28
    sw, st, sq, stbA, sjA, sidx, sxcd = 52, 53, 54, 55, 56, 57, 58
    skc = [59, 60, 61, 62]
    szero = 63
    srb, su, scb, sfs, srbC, srotC = 64, 65, 66, 67, 68, 69
    t0, t1, t2, t3 = 32, 33, 34, 35
    sL1 = 36
    sc_log2e, sc_eps6, sc_c0, sc_c1 = 37, 38, 39, 40
    sT = 41
    sspin = 43
    sWC = 44
    sact = 45

    P("s_cmp_ge_u32 s2, 256\ns_cbranch_scc1 L_exit")
    stamp()
    if OPT["stamps"]:
        for i in range(71, 100): P(f"s_mov_b32 s{i}, 0")
        P("s_memtime s[100:101]\ns_waitcnt lgkmcnt(0)\ns_mov_b32 s99, s100")
    P("s_load_dwordx16 s[32:47], s[0:1], 0\ns_load_dwordx4 s[48:51], s[0:1], 64")
    P("v_and_b32 v1, 63, v0\nv_lshrrev_b32 v2, 6, v0")
    P(f"v_readfirstlane_b32 s{sw}, v2")
    P(f"s_and_b32 s{sxcd}, s2, 7\ns_lshr_b32 s{sidx}, s2, 3")
    P(f"s_lshr_b32 s3, s{sxcd}, 1\ns_lshl_b32 s{stbA}, s3, 3\ns_lshr_b32 s3, s{sidx}, 2\ns_add_u32 s{stbA}, s{stbA}, s3")
    P(f"s_add_u32 s{skc[0]}, s3, s{sidx}\ns_and_b32 s{skc[0]}, s{skc[0]}, 3")
    P(f"s_and_b32 s3, s{sxcd}, 1\ns_lshl_b32 s{sjA}, s3, 2\ns_and_b32 s3, s{sidx}, 3\ns_add_u32 s{sjA}, s{sjA}, s3")
    vX, vKV, vQ, vL16 = 2, 3, 4, 5
    P("v_lshrrev_b32 v6, 3, v1\nv_and_b32 v7, 7, v1\nv_lshrrev_b32 v8, 4, v1")
    P(f"s_lshl_b32 s3, s{sw}, 2\nv_add_u32 v9, s3, v8\nv_and_b32 v9, 7, v9\nv_xor_b32 v9, v9, v7\nv_lshlrev_b32 v{vX}, 4, v9")
    P(f"s_lshl_b32 s3, s{sw}, 3\nv_add_u32 v10, s3, v6\nv_lshl_add_u32 v{vX}, v10, 10, v{vX}")
    P(f"s_lshl_b32 s3, s{sw}, 4\nv_add_u32 v9, s3, v8\nv_mul_u32_u24 v{vKV}, 3072, v9")
    P(f"v_and_b32 v9, 1, v6\nv_add_u32 v9, 1, v9\nv_lshl_add_u32 v{vKV}, v9, 10, v{vKV}")
    P(f"v_lshlrev_b32 v9, 1, v8\nv_xor_b32 v9, v9, v7\nv_lshl_add_u32 v{vKV}, v9, 4, v{vKV}")
    P(f"v_lshlrev_b32 v{vL16}, 4, v1")
    for s in range(1, 4):
        P(f"s_add_u32 s{skc[s]}, s{skc[0]}, {s}\ns_and_b32 s{skc[s]}, s{skc[s]}, 3")
    P(f"s_lshr_b32 s{st}, s{sw}, 2\ns_and_b32 s{sq}, s{sw}, 3")
    P("s_waitcnt lgkmcnt(0)")
    srd(SX, 32, 2048*1024); srd(SQ, 34, 512*3072); srd(SWS, 50, WS_END)
    srd(SO, 36, 512*1024); srd(SD, 44, 1792*1024); srd(SOUT, 46, 2048*1024)
    P(f"s_cmp_eq_u32 s{st}, 0\ns_cselect_b32 s{SC}, s40, s42\ns_cselect_b32 s{SC+1}, s41, s43\ns_mov_b32 s{SC+3}, 0x20000")
    P(f"s_cmp_lt_u32 s{sidx}, 28\ns_cselect_b32 s{SC+2}, {512*3584}, 0\ns_cselect_b32 s{sact}, 1, 0")
    P(f"s_lshl_b32 s{sL1}, s{sw}, 10")
    P(f"s_cmp_eq_u32 s{stbA}, 0\ns_cselect_b32 s{szero}, s{sw}, 0\ns_cmp_eq_u32 s{szero}, 7\ns_cbranch_scc0 L_nozero")
    P("v_mov_b32 v12, 0\nv_mov_b32 v13, 0\nv_mov_b32 v14, 0\nv_mov_b32 v15, 0")
    P(f"s_mul_i32 s{t0}, s{sjA}, 4352")
    for i in range(4):
        P(f"buffer_store_dwordx4 v[12:15], v{vL16}, {sr(SWS)}, s{t0} offen offset:{i*1024} sc1")
    P(f"s_add_u32 s{t0}, s{t0}, 4096\ns_mov_b64 exec, 0xffff")
    P(f"buffer_store_dwordx4 v[12:15], v{vL16}, {sr(SWS)}, s{t0} offen sc1")
    P(f"s_lshl_b32 s{t0}, s{sjA}, 7\ns_add_u32 s{t0}, s{t0}, {WS_CNT}\ns_mov_b64 exec, 0xff")
    P(f"buffer_store_dwordx4 v[12:15], v{vL16}, {sr(SWS)}, s{t0} offen sc1")
    P(f"buffer_store_dwordx4 v[12:15], v{vL16}, {sr(SWS)}, s{t0} offen offset:{WS_REL-WS_CNT} sc1")
    P("s_mov_b64 exec, -1\nL_nozero:")

    def dma(tag, voff, srd_, soff, lds_s, lds_imm, sc=""):
        P(f"s_add_u32 m0, s{lds_s}, {lds_imm}")
        VM.op(tag, f"buffer_load_dwordx4 v{voff}, {sr(srd_)}, s{soff} offen {sc} lds")
    def dma_x(s):
        P(f"s_lshl_b32 s{t0}, s{stbA}, 16\ns_lshl_b32 s{t1}, s{skc[s]}, 8\ns_add_u32 s{t0}, s{t0}, s{t1}")
        dma(f"x{s}", vX, SX, t0, sL1, s*U)
        P(f"s_add_u32 s{t0}, s{t0}, 128")
        dma(f"x{s}", vX, SX, t0, sL1, s*U + 8192)
    def dma_kv(s, unit):
        P(f"s_mul_i32 s{t0}, s{skc[s]}, {128*3072}\ns_lshl_b32 s{t1}, s{sjA}, 7\ns_add_u32 s{t0}, s{t0}, s{t1}\ns_lshl_b32 s{t1}, s{sw}, 12")
        for i in range(4):
            if i: P(f"s_add_u32 s{t0}, s{t0}, 12288")
            dma(f"kv{s}", vKV, SQ, t0, t1, unit*U + i*1024)
    def dma_q(s, unit):
        P(f"s_mul_i32 s{t0}, s{skc[s]}, {128*3072}\ns_lshl_b32 s{t1}, s{sjA}, 7\ns_add_u32 s{t0}, s{t0}, s{t1}")
        dma(f"q{s}", vQ, SQ, t0, sL1, unit*U)
        P(f"s_add_u32 s{t0}, s{t0}, {64*3072}")
        dma(f"q{s}", vQ, SQ, t0, sL1, unit*U + 8192)
    dma_x(0); dma_kv(0, 4); dma_x(1); dma_kv(1, 6); dma_x(2); dma_kv(2, 8); dma_x(3)
    warm("A")
    mark("A")
    P(f"v_mul_u32_u24 v{vQ}, 3072, v10\nv_and_b32 v9, 1, v8\ns_and_b32 s3, s{sw}, 1\ns_lshl_b32 s3, s3, 1\nv_or_b32 v9, s3, v9")
    P(f"v_lshlrev_b32 v9, 1, v9\nv_xor_b32 v9, v9, v7\nv_lshl_add_u32 v{vQ}, v9, 4, v{vQ}")
    P(f"s_lshr_b32 s3, s{sidx}, 4\ns_lshl_b32 s{srb}, s{sxcd}, 1\ns_add_u32 s{srb}, s{srb}, s3\ns_bfe_u32 s{su}, s{sidx}, 0x10003\ns_and_b32 s{scb}, s{sidx}, 7")
    P(f"s_lshl_b32 s3, s{srb}, 2\ns_add_u32 s{sT}, s3, s{su}\ns_add_u32 s3, s3, 3\ns_sub_u32 s{sT+1}, s3, s{su}")
    P(f"s_mul_i32 s{srotC}, s{sidx}, 37\ns_lshr_b32 s{srotC}, s{srotC}, 8\ns_mul_i32 s3, s{srotC}, 7\ns_sub_u32 s{sfs}, s{sidx}, s3")
    P(f"s_and_b32 s3, s{sxcd}, 1\ns_mul_i32 s3, s3, 7\ns_add_u32 s{sfs}, s{sfs}, s3")
    P(f"s_and_b32 s{srotC}, s{srotC}, 3\ns_lshr_b32 s3, s{sxcd}, 1\ns_lshl_b32 s3, s3, 2\ns_add_u32 s{srbC}, s3, s{srotC}")
    P(f"s_mov_b32 s{sc_log2e}, {LOG2E:#x}\ns_mov_b32 s{sc_eps6}, {EPS6:#x}")
    c0 = -2.0 * 0.7978845608028654 * 1.4426950408889634
    P(f"s_mov_b32 s{sc_c0}, {f2u(c0):#x}\ns_mov_b32 s{sc_c1}, {f2u(c0*0.044715):#x}")
    vFB, vFC = 24, 25
    P(f"s_lshl_b32 s{t0}, s{srb}, 1\ns_add_u32 s{t0}, s{t0}, s{su}\ns_lshl_b32 s{t0}, s{t0}, 3\ns_add_u32 s{t0}, s{t0}, s{scb}\ns_lshl_b32 s{t0}, s{t0}, 7\ns_add_u32 s{t0}, s{t0}, {WS_FB}\nv_mov_b32 v{vFB}, s{t0}")
    P(f"s_lshl_b32 s{t0}, s{srbC}, 4\ns_add_u32 s{t0}, s{t0}, s{sfs}\ns_lshl_b32 s{t0}, s{t0}, 7\ns_add_u32 s{t0}, s{t0}, {WS_FC}\nv_mov_b32 v{vFC}, s{t0}")
    P(f"s_cmp_eq_u32 s{sw}, 0\ns_cbranch_scc0 L_nf0\ns_mov_b64 exec, 1\nv_mov_b32 v9, 0")
    P(f"buffer_store_dword v9, v{vFB}, {sr(SWS)}, 0 offen sc1")
    P(f"s_cmp_eq_u32 s{sact}, 0\ns_cbranch_scc1 L_nf1")
    P(f"buffer_store_dword v9, v{vFC}, {sr(SWS)}, 0 offen sc1")
    P("L_nf1:\ns_mov_b64 exec, -1\nL_nf0:")
    XA, WA, vONE, vST = [8+4, 13, 14, 15], [16, 17, 18, 19], 20, 21
    XA = [12, 13, 14, 15]
    P(f"v_lshrrev_b32 v22, 5, v1\ns_lshl_b32 s3, s{st}, 1\nv_or_b32 v9, s3, v22\nv_bfe_u32 v11, v1, 1, 3\nv_xor_b32 v9, v9, v11\nv_lshlrev_b32 v{XA[0]}, 4, v9")
    P(f"v_and_b32 v23, 31, v1\nv_lshl_add_u32 v{XA[0]}, v23, 7, v{XA[0]}\ns_lshl_b32 s3, s{st}, 12\nv_add_u32 v{XA[0]}, s3, v{XA[0]}")
    for i in range(1, 4): P(f"v_xor_b32 v{XA[i]}, {32*i}, v{XA[0]}")
    P(f"v_bfe_u32 v11, v1, 2, 2\nv_lshl_add_u32 v9, v22, 3, v11\nv_lshlrev_b32 v{WA[0]}, 8, v9\nv_and_b32 v9, 1, v8\nv_lshl_add_u32 v{WA[0]}, v9, 7, v{WA[0]}")
    P(f"v_xor_b32 v9, s{sq}, v11\nv_lshl_add_u32 v{WA[0]}, v9, 5, v{WA[0]}\nv_and_b32 v9, 3, v1\nv_lshl_add_u32 v{WA[0]}, v9, 3, v{WA[0]}")
    P(f"s_add_u32 s3, s3, 65536\nv_add_u32 v{WA[0]}, s3, v{WA[0]}\nv_xor_b32 v{WA[1]}, 4096, v{WA[0]}")
    P(f"v_add_u32 v{WA[2]}, 65536, v{WA[0]}\nv_add_u32 v{WA[3]}, 65536, v{WA[1]}")
    P(f"v_mov_b32 v{vONE}, 0x3f803f80\nv_add_u32 v{vST}, s{sL1}, v{vL16}")
    ACC, FX, FW, FS = 32, 48, 80, 112
    vSUM, vSQ, vCS = 26, 27, 28
    for r in range(26, 32): P(f"v_mov_b32 v{r}, 0")
    kvunit = [4, 6, 8, 4]
    def kv_stage(s):
        wa = WA[0:2] if kvunit[s] < 8 else WA[2:4]
        wb = (kvunit[s] % 4) * U
        def rd(ks):
            LG.op(f"f{ks}", f"ds_read_b128 {vr(FX+4*ks,4)}, v{XA[ks&3]} offset:{s*U+(ks>>2)*8192}")
            for i in range(2):
                LG.op(f"f{ks}", f"ds_read_b64_tr_b16 {vr(FW+4*ks+2*i,2)}, v{wa[ks&1]} offset:{wb+(ks>>1)*8192+i*1024}")
        for ks in range(4): rd(ks)
        for i in range(2): LG.op("fs", f"ds_read_b128 {vr(FS+4*i,4)}, v{vST} offset:{s*U+i*8192}")
        for ks in range(8):
            LG.wait(f"f{ks}")
            c = "0" if (s == 0 and ks == 0) else vr(ACC, 16)
            P(f"v_mfma_f32_32x32x16_bf16 {vr(ACC,16)}, {vr(FX+4*ks,4)}, {vr(FW+4*ks,4)}, {c}")
            if ks + 4 < 8: rd(ks + 4)
            if ks % 2 == 0:
                for j in range(4):
                    a = vCS + 3*(j & 1)
                    P(f"v_dot2_f32_bf16 v{a}, v{FW+4*ks+j}, v{vONE}, v{a}")
            elif ks >= 3:
                if ks == 3: LG.wait("fs")
                rr = {3: range(0, 3), 5: range(3, 6), 7: range(6, 8)}[ks]
                for j in rr:
                    a = 3*(j & 1)
                    P(f"v_dot2_f32_bf16 v{vSUM+a}, v{FS+j}, v{vONE}, v{vSUM+a}")
                    P(f"v_dot2_f32_bf16 v{vSQ+a}, v{FS+j}, v{FS+j}, v{vSQ+a}")
    stamp()
    VM.wait("kv0")
    P(f"s_cmp_eq_u32 s{szero}, 7\ns_cbranch_scc0 L_noflag")
    P(f"s_lshl_b32 s3, s{sjA}, 2\nv_mov_b32 v9, s3\nv_mov_b32 v11, 1\ns_mov_b64 exec, 1")
    P("global_store_dword v9, v11, s[48:49] sc1\ns_mov_b64 exec, -1\nL_noflag:")
    P("s_barrier")
    stamp()
    kv_stage(0)
    VM.wait("kv1"); P("s_barrier"); dma_kv(3, 4)
    kv_stage(1)
    VM.wait("kv2"); P("s_barrier"); dma_q(0, 6); dma_q(1, 7)
    kv_stage(2)
    VM.wait("kv3"); P("s_barrier"); dma_q(2, 8)
    vZF = 120
    P("v_and_b32 v9, 7, v1\nv_lshlrev_b32 v121, 2, v9")
    VM.op("zf", f"global_load_dword v{vZF}, v121, s[48:49] sc1")
    kv_stage(3)
    stamp()
    SCR = 9*U
    RS, MR, CQ, CSX, KVS = SCR, SCR+256, SCR+512, SCR+1024, SCR+2048
    P(f"v_add_f32 v{vSUM}, v{vSUM}, v{vSUM+3}\nv_add_f32 v{vSQ}, v{vSQ}, v{vSQ+3}\nv_add_f32 v{vCS}, v{vCS}, v{vCS+3}")
    for m in ("quad_perm:[1,0,3,2]", "quad_perm:[2,3,0,1]", "row_half_mirror"):
        for v in (vSUM, vSQ): P(f"v_add_f32_dpp v{v}, v{v}, v{v} {m} row_mask:0xf bank_mask:0xf")
    P(f"v_mov_b32 v{vCS+3}, v{vCS}\nv_permlane32_swap_b32 v{vCS}, v{vCS+3}\nv_add_f32 v{vCS}, v{vCS}, v{vCS+3}")
    P(f"v_mul_f32 v{vSUM}, {f2u(-1.0/512):#x}, v{vSUM}\nv_mov_b32 v29, {EPS5:#x}\nv_fmac_f32 v29, {f2u(1.0/512):#x}, v{vSQ}")
    P(f"v_fma_f32 v29, -v{vSUM}, v{vSUM}, v29\nv_rsq_f32 v29, v29\nv_mul_f32 v{vSUM}, v{vSUM}, v29")
    P(f"v_lshlrev_b32 v9, 2, v10\nv_add_u32 v9, {SCR}, v9")
    LG.op("w", f"ds_write2st64_b32 v9, v29, v{vSUM} offset0:0 offset1:1")
    P(f"s_lshl_b32 s3, s{sw}, 7\ns_add_u32 s3, s3, {CSX}\nv_lshl_add_u32 v9, v23, 2, s3")
    LG.op("w", f"ds_write_b32 v9, v{vCS}")
    P("v_xor_b32 v9, 512, v9")
    P(f"s_lshl_b32 s3, s{st}, 7\ns_add_u32 s3, s3, {SCR}\nv_lshl_add_u32 v11, v22, 4, s3")
    VM.wait("q2")
    LG.all(); P("s_barrier")
    dma_q(3, 4)
    R1, R2 = 48, 64
    LG.op("cs", f"ds_read_b32 v{vCS+3}, v9")
    for q in range(4):
        LG.op(f"m{q}", f"ds_read_b128 {vr(R2+4*q,4)}, v11 offset:{256+32*q}")
        LG.op(f"m{q}", f"ds_read_b128 {vr(R1+4*q,4)}, v11 offset:{32*q}")
    WQ, vQA = 128, 16
    P(f"v_bfe_u32 v9, v1, 2, 2\nv_lshl_add_u32 v9, v8, 3, v9\nv_lshlrev_b32 v{vQA}, 7, v9\nv_bfe_u32 v9, v1, 3, 2\nv_xor_b32 v9, s{sq}, v9\nv_lshl_add_u32 v{vQA}, v9, 5, v{vQA}")
    P(f"v_and_b32 v9, 3, v1\nv_lshl_add_u32 v{vQA}, v9, 3, v{vQA}\nv_add_u32 v{vQA}, {4*U}, v{vQA}\nv_add_u32 v17, {4*U}, v{vQA}")
    qunit = [6, 7, 8, 4]
    def q_read(s):
        a = vQA if qunit[s] < 8 else 17
        for ks in range(4):
            for i in range(2):
                LG.op(f"wq{s}", f"ds_read_b64_tr_b16 {vr(WQ+16*s+4*ks+2*i,2)}, v{a} offset:{(qunit[s]%4)*U+ks*4096+i*512}")
    LG.wait("cs")
    P(f"v_add_f32 v{vCS}, v{vCS}, v{vCS+3}\nv_mov_b32 v{vCS+1}, v{vCS}")
    for q in range(4):
        LG.wait(f"m{q}")
        for e in range(0, 4, 2):
            r = 4*q + e
            P(f"v_pk_mul_f32 {vr(R2+r,2)}, {vr(R2+r,2)}, {vr(vCS,2)}")
            P(f"v_pk_fma_f32 {vr(ACC+r,2)}, {vr(ACC+r,2)}, {vr(R1+r,2)}, {vr(R2+r,2)}")
    q_read(0)
    def phi(regs, tmp):
        for r, t in zip(regs, tmp): P(f"v_mul_f32 v{t}, s{sc_log2e}, v{r}")
        for r, t in zip(regs, tmp): P(f"v_exp_f32 v{t}, v{t} clamp")
        for r, t in zip(regs, tmp): P(f"v_max_f32 v{r}, 0, v{r}")
        for r, t in zip(regs, tmp): P(f"v_add_f32 v{r}, s{sc_eps6}, v{r}")
        for r, t in zip(regs, tmp): P(f"v_add_f32 v{r}, v{r}, v{t}")
    P("s_mov_b32 exec_lo, 0xffff\ns_mov_b32 exec_hi, 0xffff")
    phi(list(range(ACC, ACC+16)), list(range(R1, R1+16)))
    P("s_mov_b64 vcc, exec\ns_mov_b64 exec, -1")
    PA, PB, KD = 64, 72, 80
    for i in range(8): P(f"v_cvt_pk_bf16_f32 v{PA+i}, v{ACC+2*i}, v{ACC+2*i+1}")
    for i in range(8): P(f"v_cndmask_b32 v{PB+i}, v{PA+i}, v{vONE}, vcc")
    P(f"v_mfma_f32_32x32x16_bf16 {vr(KD,16)}, {vr(PA,4)}, {vr(PB,4)}, 0")
    P(f"v_mfma_f32_32x32x16_bf16 {vr(KD,16)}, {vr(PA+4,4)}, {vr(PB+4,4)}, {vr(KD,16)}")
    q_read(1); q_read(2)
    P(f"v_bfe_u32 v9, v1, 2, 2\nv_xor_b32 v9, v9, v22\nv_lshlrev_b32 v9, 4, v9\nv_and_b32 v11, 15, v1\nv_lshl_add_u32 v9, v11, 6, v9")
    P(f"v_lshlrev_b32 v11, 4, v22\nv_add_u32 v11, 1024, v11\nv_cndmask_b32 v9, v9, v11, vcc\nv_xor_b32 v11, 32, v9")
    P(f"s_mul_i32 s3, s{sw}, 1088\ns_add_u32 s3, s3, {KVS}\nv_add_u32 v9, s3, v9\nv_add_u32 v11, s3, v11")
    LG.op("w", f"ds_write_b128 v9, {vr(KD,4)}")
    LG.op("w", f"ds_write_b128 v11, {vr(KD+4,4)}")
    P(f"v_lshlrev_b32 v18, 2, v1\ns_lshl_b32 s3, s{sw}, 9\ns_add_u32 s{t0}, s3, {KVS}\nv_add_u32 v9, s{t0}, v18\nv_add_u32 v11, {KVS+4096}, v18")
    VM.wait("zf")
    P(f"s_mov_b32 s{sspin}, {SPIN}\nL_zp:\nv_cmp_eq_u32 vcc, 0, v{vZF}\ns_cbranch_vccz L_zok")
    P(f"global_load_dword v{vZF}, v121, s[48:49] sc1\ns_sub_u32 s{sspin}, s{sspin}, 1\ns_waitcnt vmcnt(0)\ns_cbranch_scc0 L_zp\nL_zok:")
    LG.all(); P("s_barrier")
    LG.op("a", "ds_read2st64_b32 v[48:49], v9 offset0:0 offset1:1")
    LG.op("a", "ds_read2st64_b32 v[50:51], v9 offset0:17 offset1:18")
    LG.op("a", "ds_read2st64_b32 v[52:53], v11 offset0:0 offset1:17")
    P(f"s_mul_i32 s{t0}, s{sjA}, 4352\ns_add_u32 s{t1}, s{t0}, s3\ns_add_u32 s{t0}, s{t0}, 4096")
    LG.wait("a")
    P("v_add_f32 v48, v48, v50\nv_add_f32 v49, v49, v51\nv_add_f32 v52, v52, v53")
    VM.op("at", f"buffer_atomic_add_f32 v48, v18, {sr(SWS)}, s{t1} offen")
    VM.op("at", f"buffer_atomic_add_f32 v49, v18, {sr(SWS)}, s{t1} offen offset:256")
    P(f"s_cmp_eq_u32 s{sw}, 0\ns_cbranch_scc0 L_na")
    P(f"buffer_atomic_add_f32 v52, v18, {sr(SWS)}, s{t0} offen\nL_na:")
    stamp()
    vWD = 3
    P(f"v_and_b32 v9, 1, v8\nv_lshlrev_b32 v9, 2, v9\nv_xor_b32 v9, v9, v7\nv_lshlrev_b32 v9, 4, v9\nv_lshl_add_u32 v{vWD}, v6, 10, v9\ns_lshl_b32 s3, s{scb}, 7\nv_add_u32 v{vWD}, s3, v{vWD}")
    P(f"s_lshl_b32 s{t0}, s{sw}, 16\ns_lshl_b32 s{t1}, s{sw}, 13")
    for i in range(8):
        if i: P(f"s_add_u32 s{t0}, s{t0}, 8192")
        dma("wo", vWD, SO, t0, t1, 5*U + i*1024)
    XQ = [12, 13]
    P(f"v_bfe_u32 v9, v1, 1, 3\nv_xor_b32 v9, v9, v8\nv_lshlrev_b32 v{XQ[0]}, 4, v9\nv_and_b32 v19, 15, v1\nv_lshl_add_u32 v{XQ[0]}, v19, 7, v{XQ[0]}")
    P(f"s_lshl_b32 s3, s{st}, 12\nv_add_u32 v{XQ[0]}, s3, v{XQ[0]}\nv_xor_b32 v{XQ[1]}, 64, v{XQ[0]}")
    AQ = 32
    P("v_mov_b32 v26, 0\nv_mov_b32 v27, 0")
    P(f"s_lshl_b32 s3, s{st}, 7\ns_add_u32 s3, s3, {SCR}\nv_lshl_add_u32 v9, v19, 2, s3")
    LG.op("qs", "ds_read2_b32 v[28:29], v9 offset0:0 offset1:16")
    LG.op("qs", "ds_read2_b32 v[30:31], v9 offset0:64 offset1:80")
    def xq_rd(n):
        s, ks = n >> 2, n & 3
        for h in range(2):
            LG.op(f"xq{n}", f"ds_read_b128 {vr(FX+8*(n%6)+4*h,4)}, v{XQ[ks&1]} offset:{s*U+(ks>>1)*8192+h*2048}")
    for n in range(5): xq_rd(n)
    for n in range(16):
        if n == 8:
            VM.wait("q3"); P("s_barrier"); q_read(3)
        if n == 12: LG.wait("wq3")
        LG.wait(f"xq{n}")
        for h in range(2):
            c = "0" if n == 0 else vr(AQ+4*h, 4)
            P(f"v_mfma_f32_16x16x32_bf16 {vr(AQ+4*h,4)}, {vr(WQ+4*n,4)}, {vr(FX+8*(n%6)+4*h,4)}, {c}")
        if n + 5 < 16: xq_rd(n + 5)
        for j in range(4): P(f"v_dot2_f32_bf16 v{26+(j&1)}, v{WQ+4*n+j}, v{vONE}, v{26+(j&1)}")
    P("v_add_f32 v26, v26, v27\nv_mov_b32 v27, v26\nv_permlane32_swap_b32 v26, v27\nv_add_f32 v26, v26, v27")
    P("v_mov_b32 v27, v26\nv_permlane16_swap_b32 v26, v27\nv_add_f32 v26, v26, v27")
    P(f"s_lshl_b32 s3, s{sw}, 6\ns_add_u32 s3, s3, {CQ}\nv_lshl_add_u32 v9, v19, 2, s3\nv_lshl_add_u32 v11, v8, 4, s3")
    LG.op("w", "ds_write_b32 v9, v26")
    LG.op("cq", "ds_read_b128 v[48:51], v11")
    LG.wait("cq")
    for h in range(2):
        for r in range(4):
            P(f"v_mul_f32 v{AQ+4*h+r}, v{AQ+4*h+r}, v{28+h}")
        for r in range(4):
            P(f"v_fmac_f32 v{AQ+4*h+r}, v{48+r}, v{30+h}")
    phi(list(range(AQ, AQ+8)), list(range(56, 64)))
    for i in range(4): P(f"v_cvt_pk_bf16_f32 v{64+i}, v{AQ+2*i}, v{AQ+2*i+1}")
    P("v_permlane16_swap_b32 v64, v66\nv_permlane16_swap_b32 v65, v67")
    P(f"s_lshl_b32 s{t0}, s{stbA}, 1\ns_add_u32 s{t0}, s{t0}, s{st}\ns_lshl_b32 s{t0}, s{t0}, 5\ns_lshl_b32 s{t1}, s{sjA}, 2\ns_add_u32 s{t0}, s{t0}, s{t1}\ns_add_u32 s{t0}, s{t0}, s{sq}\ns_lshl_b32 s{t0}, s{t0}, 10\ns_add_u32 s{t0}, s{t0}, {WS_PQ}")
    VM.op("pqs", f"buffer_store_dwordx4 v[64:67], v{vL16}, {sr(SWS)}, s{t0} offen sc1")
    stamp()
    vWC, vCA = 2, 4
    P(f"s_lshl_b32 s3, s{sq}, 3\nv_add_u32 v9, s3, v8\nv_mul_u32_u24 v{vWC}, 3584, v9\ns_lshl_b32 s3, s{st}, 2\nv_or_b32 v9, s3, v8\nv_lshlrev_b32 v9, 1, v9\nv_xor_b32 v9, v9, v19\nv_lshl_add_u32 v{vWC}, v9, 4, v{vWC}")
    P(f"v_and_b32 v9, 1, v8\nv_lshlrev_b32 v{vCA}, 13, v9\nv_bfe_u32 v9, v1, 2, 2\nv_lshl_add_u32 v9, v22, 2, v9\nv_lshl_add_u32 v{vCA}, v9, 8, v{vCA}")
    P(f"v_bfe_u32 v9, v1, 2, 3\nv_xor_b32 v9, s{sw}, v9\nv_lshl_add_u32 v{vCA}, v9, 5, v{vCA}\nv_and_b32 v9, 3, v1\nv_lshl_add_u32 v{vCA}, v9, 3, v{vCA}")
    vCA1, vCA2 = 16, 17
    P(f"v_add_u32 v{vCA1}, {4*U}, v{vCA}\nv_add_u32 v{vCA2}, {8*U}, v{vCA}")
    P(f"s_lshl_b32 s{sWC}, s{sfs}, 8")
    WC, CS = 128, 96
    cunit = {}
    def dma_c(n, unit):
        cunit[n] = unit
        P(f"s_lshl_b32 s{t0}, s{srotC}, 2\ns_add_u32 s{t0}, s{t0}, {n}\ns_and_b32 s{t0}, s{t0}, 15\ns_mul_i32 s{t0}, s{t0}, {32*3584}\ns_add_u32 s{t0}, s{t0}, s{sWC}\ns_lshl_b32 s{t1}, s{sw}, 11")
        dma(f"c{n}", vWC, SC, t0, t1, unit*U)
        P(f"s_add_u32 s{t0}, s{t0}, {4*3584}")
        dma(f"c{n}", vWC, SC, t0, t1, unit*U + 1024)
    def c_read(n):
        unit = cunit[n]
        a = [vCA, vCA1, vCA2][unit // 4]
        for ks in range(2):
            for i in range(2):
                LG.op(f"cr{n}", f"ds_read_b64_tr_b16 {vr(WC+8*n+4*ks+2*i,2)}, v{a} offset:{(unit%4)*U+ks*4096+i*2048}")
    ONES4 = 112
    def c_sum(n):
        LG.wait(f"cr{n}")
        for ks in range(2):
            c = "0" if (n == 0 and ks == 0) else vr(CS, 16)
            P(f"v_mfma_f32_32x32x16_bf16 {vr(CS,16)}, {vr(WC+8*n+4*ks,4)}, {vr(ONES4,4)}, {c}")
    for i in range(4): P(f"v_mov_b32 v{ONES4+i}, v{vONE}")
    VM.all(True); LG.all(); P("s_barrier")
    stamp()
    P(f"s_cmp_eq_u32 s{sw}, 0\ns_cbranch_scc0 L_a1")
    P(f"s_lshl_b32 s{t0}, s{sxcd}, 7\ns_add_u32 s{t0}, s{t0}, {WS_CNT}\nv_mov_b32 v9, 0\nv_mov_b32 v11, 1\ns_mov_b64 exec, 1")
    P(f"buffer_atomic_add v11, v9, {sr(SWS)}, s{t0} offen sc0\ns_waitcnt vmcnt(0)\nv_readfirstlane_b32 s3, v11\ns_cmp_eq_u32 s3, 31\ns_cbranch_scc0 L_a0")
    P(f"s_mov_b64 exec, 0xff\nv_lshlrev_b32 v9, 7, v1\nv_mov_b32 v11, 1\ns_lshl_b32 s{t0}, s{sxcd}, 2\ns_add_u32 s{t0}, s{t0}, {WS_REL}")
    P(f"buffer_store_dword v11, v9, {sr(SWS)}, s{t0} offen sc1")
    P("L_a0:\ns_mov_b64 exec, -1\nL_a1:\ns_barrier")
    XR = 2*U + 8192
    P(f"s_cmp_eq_u32 s{st}, 0\ns_cselect_b32 s{t0}, s{sT}, s{sT+1}\ns_lshl_b32 s{t0}, s{t0}, 2\ns_add_u32 s{t0}, s{t0}, s{sq}\ns_lshl_b32 s{t0}, s{t0}, 13")
    dma("xr", vWD, SX, t0, sL1, XR)
    for n, u in zip(range(5), (0, 1, 3, 4, 9)): dma_c(n, u)
    mark(None)
    warm("B")
    mark("B")
    vWF0, vWF1, vKA0, vKA1 = 12, 13, 14, 15
    P(f"v_lshlrev_b32 v{vWF0}, 9, v22\nv_bfe_u32 v9, v1, 2, 2\nv_lshl_add_u32 v{vWF0}, v9, 7, v{vWF0}\nv_and_b32 v9, 1, v6\nv_lshl_add_u32 v{vWF0}, v9, 6, v{vWF0}")
    P(f"v_and_b32 v9, 1, v8\nv_lshl_add_u32 v{vWF0}, v9, 5, v{vWF0}\nv_and_b32 v9, 3, v1\nv_lshl_add_u32 v18, v9, 3, v{vWF0}")
    P(f"s_lshl_b32 s3, s{sq}, 14\ns_add_u32 s3, s3, {5*U}\nv_add_u32 v{vWF0}, s3, v18\nv_xor_b32 v{vWF1}, 64, v{vWF0}")
    P(f"v_lshlrev_b32 v9, 1, v22\nv_bfe_u32 v11, v1, 2, 2\nv_xor_b32 v9, v9, v11\nv_lshlrev_b32 v9, 4, v9\nv_lshl_add_u32 v9, v19, 6, v9")
    P(f"v_lshlrev_b32 v11, 5, v22\nv_add_u32 v11, 1024, v11\ns_mov_b32 vcc_lo, 0xffff\ns_mov_b32 vcc_hi, 0xffff\nv_cndmask_b32 v9, v11, v9, vcc\nv_xor_b32 v11, 16, v9")
    P(f"s_mul_i32 s3, s{sq}, 8704\nv_add_u32 v{vKA0}, s3, v9\nv_add_u32 v{vKA1}, s3, v11")
    P(f"v_and_b32 v9, 2, v1\nv_lshlrev_b32 v9, 1, v9\ns_lshl_b32 s3, s{sq}, 1\nv_xor_b32 v9, s3, v9\nv_lshlrev_b32 v9, 4, v9\nv_lshl_add_u32 v9, v23, 7, v9\nv_lshl_add_u32 v9, v22, 3, v9")
    P(f"s_lshl_b32 s3, s{st}, 12\ns_add_u32 s3, s3, {XR}\nv_add_u32 v9, s3, v9")
    HRES = 28
    VM.wait("c4"); P("s_barrier")
    LG.op("xr", f"ds_read_b64 {vr(HRES,2)}, v9")
    LG.op("xr", f"ds_read_b64 {vr(HRES+2,2)}, v9 offset:16")
    for n in range(5): c_read(n)
    LG.all(); P("s_barrier")
    for n, u in zip(range(5, 8), (3, 4, 9)): dma_c(n, u)
    for n in range(5): c_sum(n)
    stamp()
    P(f"s_cmp_eq_u32 s{sw}, 0\ns_cbranch_scc0 L_w1")
    P(f"s_mov_b64 exec, 0xff\nv_lshlrev_b32 v9, 2, v1\ns_lshl_b32 s{t0}, s{sxcd}, 7\ns_add_u32 s{t0}, s{t0}, {WS_REL}\ns_mov_b32 s{sspin}, {SPIN}")
    P(f"L_p1:\nbuffer_load_dword v11, v9, {sr(SWS)}, s{t0} offen sc1\ns_sub_u32 s{sspin}, s{sspin}, 1\ns_waitcnt vmcnt(0)\ns_cbranch_scc1 L_p1x")
    P("v_cmp_eq_u32 vcc, 0, v11\ns_cbranch_vccnz L_p1\nL_p1x:\ns_mov_b64 exec, -1\nL_w1:\ns_barrier")
    stamp()
    for i in range(4):
        P(f"s_add_u32 s{t0}, s{sL1}, {i*8192}")
        dma("kz", vL16, SWS, t0, sL1, i*8192, "sc1")
    P(f"s_cmp_lt_u32 s{sw}, 2\ns_cbranch_scc0 L_b0\ns_add_u32 s{t0}, s{sL1}, 32768\ns_add_u32 m0, s{sL1}, 32768")
    P(f"buffer_load_dwordx4 v{vL16}, {sr(SWS)}, s{t0} offen sc1 lds\nL_b0:")
    PQ, BACC, D1, KF, OO, WF = 192, 32, 64, 224, 116, 240
    P(f"s_cmp_eq_u32 s{st}, 0\ns_cselect_b32 s{t2}, s{sT}, s{sT+1}\ns_lshl_b32 s{t0}, s{t2}, 2\ns_add_u32 s{t0}, s{t0}, s{sq}\ns_lshl_b32 s{t0}, s{t0}, 13\ns_add_u32 s{t0}, s{t0}, {WS_PQ}\ns_add_u32 s{t1}, s{t0}, 4096")
    for hh in range(8):
        VM.op(f"pq{hh}", f"buffer_load_dwordx4 {vr(PQ+4*hh,4)}, v{vL16}, {sr(SWS)}, s{t0 + hh//4} offen offset:{(hh%4)*1024} sc1")
    VM.wait("kz"); P("s_barrier")
    def kv_rd(hh):
        b = KF + 8*(hh & 1)
        LG.op(f"kv{hh}", f"ds_read_b128 {vr(b,4)}, v{vKA0} offset:{hh*1088}")
        LG.op(f"kv{hh}", f"ds_read_b128 {vr(b+4,4)}, v{vKA1} offset:{hh*1088}")
    def wo_rd(hh):
        b = WF + 8*(hh & 1)
        for ct in range(2):
            for i in range(2):
                LG.op(f"wo{hh}", f"ds_read_b64_tr_b16 {vr(b+4*ct+2*i,2)}, v{vWF0+ct} offset:{hh*2048+i*1024}")
    def att(hh):
        b = KF + 8*(hh & 1); d = D1 + 16*(hh & 1)
        LG.wait(f"kv{hh}")
        for i in range(4): P(f"v_cvt_pk_bf16_f32 v{b+i}, v{b+2*i}, v{b+2*i+1}")
        VM.wait(f"pq{hh}")
        P(f"v_mfma_f32_32x32x16_bf16 {vr(d,16)}, {vr(b,4)}, {vr(PQ+4*hh,4)}, 0")
    def post(hh):
        d = D1 + 16*(hh & 1); o = OO + 4*(hh & 1); b = WF + 8*(hh & 1)
        P(f"v_add_f32 v{d+8}, s{sc_eps6}, v{d+8}\nv_rcp_f32 v{d+8}, v{d+8}")
        for e in range(8): P(f"v_mul_f32 v{d+e}, v{d+e}, v{d+8}")
        for i in range(4): P(f"v_cvt_pk_bf16_f32 v{o+i}, v{d+2*i}, v{d+2*i+1}")
        LG.wait(f"wo{hh}")
        for ct in range(2):
            c = "0" if hh == 0 else vr(BACC+16*ct, 16)
            P(f"v_mfma_f32_32x32x16_bf16 {vr(BACC+16*ct,16)}, {vr(b+4*ct,4)}, {vr(o,4)}, {c}")
    kv_rd(0); kv_rd(1); wo_rd(0)
    for n in range(5, 8): c_read(n)
    att(0)
    LG.all(); P("s_barrier")
    for n, u in zip(range(8, 11), (3, 4, 9)): dma_c(n, u)
    for hh in range(8):
        if hh + 1 < 8:
            wo_rd(hh + 1)
            att(hh + 1)
        if hh + 2 < 8: kv_rd(hh + 2)
        post(hh)
    P(f"s_lshl_b32 s3, s{st}, 15\ns_lshl_b32 s{t0}, s{sq}, 11\ns_add_u32 s{t0}, s{t0}, s3\ns_add_u32 s{t0}, s{t0}, {5*U}\nv_add_u32 v9, s{t0}, v{vL16}")
    P(f"s_lshl_b32 s{t0}, s{sw}, 13\ns_add_u32 s{t0}, s{t0}, {5*U}\nv_add_u32 v11, s{t0}, v{vL16}")
    P("s_barrier")
    for f in range(4):
        for h in range(2):
            LG.op("w", f"ds_write_b128 v9, {vr(BACC+8*f+4*h,4)} offset:{f*8192+h*1024}")
    X0 = 64
    P("s_mov_b32 s3, 0xffff0000")
    for i in range(4): P(f"v_lshlrev_b32 v{X0+2*i}, 16, v{HRES+i}\nv_and_b32 v{X0+2*i+1}, s3, v{HRES+i}")
    P(f"s_lshl_b32 s{t0}, s{t2}, 3\ns_add_u32 s{t0}, s{t0}, s{scb}\ns_lshl_b32 s{t0}, s{t0}, 2\ns_add_u32 s{t0}, s{t0}, s{sq}\ns_lshl_b32 s{t0}, s{t0}, 10\ns_add_u32 s{t0}, s{t0}, {WS_HF}")
    LG.all(); P("s_barrier")
    for k in range(4):
        for h in range(2):
            LG.op(f"r{k}", f"ds_read_b128 {vr(BACC+8*k+4*h,4)}, v11 offset:{k*2048+h*1024}")
    for k in range(4):
        LG.wait(f"r{k}")
        for e in range(0, 8, 2): P(f"v_pk_add_f32 {vr(X0+e,2)}, {vr(X0+e,2)}, {vr(BACC+8*k+e,2)}")
    for i in range(4): P(f"v_cvt_pk_bf16_f32 v{HRES+i}, v{X0+2*i}, v{X0+2*i+1}")
    VM.op("hs", f"buffer_store_dwordx4 {vr(HRES,4)}, v{vL16}, {sr(SWS)}, s{t0} offen sc1")
    stamp()
    for n in range(5, 8): c_sum(n)
    VM.all(); P("s_barrier")
    P(f"s_cmp_eq_u32 s{sw}, 0\ns_cbranch_scc0 L_b1\ns_mov_b64 exec, 1\nv_mov_b32 v9, 1")
    P(f"buffer_store_dword v9, v{vFB}, {sr(SWS)}, 0 offen sc1\ns_mov_b64 exec, -1\nL_b1:")
    stamp()
    sWD = 59
    P(f"s_mul_i32 s{sWD}, s{sw}, {224*1024}")
    wslot = {}
    def dma_wd(ks, base, per):
        wslot[ks] = (base, per)
        P(f"s_add_u32 s{t0}, s{sWD}, {ks*16384}\ns_lshl_b32 s{t1}, s{sw}, {per}")
        dma(f"wd{ks}", vWD, SD, t0, t1, base)
        P(f"s_add_u32 s{t0}, s{t0}, 8192")
        dma(f"wd{ks}", vWD, SD, t0, t1, base + 1024)
    early = [(0, 9*U, 11)] + [(1+2*t+j, 2*U*t + j*2048, 12) for t in range(3) for j in range(2)]
    P(f"s_cmp_eq_u32 s{sact}, 0\ns_cbranch_scc0 L_cact")
    save = (VM.n, dict(VM.last), VM.done)
    for e in early: dma_wd(*e)
    P("s_waitcnt vmcnt(0)\ns_branch L_djoin\nL_cact:")
    VM.n, VM.last, VM.done = save
    for n, u in zip(range(11, 15), (5, 6, 7, 8)): dma_c(n, u)
    for n in range(8, 11): c_read(n)
    LG.all(); P("s_barrier")
    dma_c(15, 9)
    for n in range(8, 11): c_sum(n)
    P(f"s_lshl_b32 s{t2}, s{srotC}, 1\ns_add_u32 s{t2}, s{t2}, s{sw}\ns_and_b32 s{t2}, s{t2}, 7")
    P(f"s_lshl_b32 s{t0}, s{srbC}, 4\ns_add_u32 s{t0}, s{t0}, s{t2}\ns_lshl_b32 s{t0}, s{t0}, 7\ns_add_u32 s{t0}, s{t0}, {WS_FB}")
    P(f"s_mov_b64 exec, 3\nv_lshlrev_b32 v9, 10, v1\ns_mov_b32 s{sspin}, {SPIN}")
    P(f"L_p2:\nbuffer_load_dword v11, v9, {sr(SWS)}, s{t0} offen sc1\ns_sub_u32 s{sspin}, s{sspin}, 1\ns_waitcnt vmcnt(0)\ns_cbranch_scc1 L_p2x")
    P("v_cmp_eq_u32 vcc, 0, v11\ns_cbranch_vccnz L_p2\nL_p2x:\ns_mov_b64 exec, -1")
    VM.done = VM.n
    stamp()
    sH = 60
    P(f"s_lshl_b32 s{sH}, s{srbC}, 5\ns_add_u32 s{sH}, s{sH}, s{t2}\ns_lshl_b32 s{sH}, s{sH}, 12\ns_add_u32 s{sH}, s{sH}, {WS_HF}")
    sL4 = 61
    P(f"s_lshl_b32 s{sL4}, s{sw}, 12")
    def dma_h(t):
        P(f"s_add_u32 s{t0}, s{sH}, {t*32768}\ns_add_u32 m0, s{sL4}, {t*32768}")
        for i in range(4):
            VM.op(f"h{t}", f"buffer_load_dwordx4 v{vL16}, {sr(SWS)}, s{t0} offen offset:{i*1024} sc1 lds")
    dma_h(0); dma_h(1)
    P("s_barrier")
    for n in range(11, 16): c_read(n)
    for n in range(11, 16): c_sum(n)
    A2 = [32, 48]; HF_, SF, ET, PK, SP = 80, 64, 72, 112, 116
    vNM, vV, vA0, vA1 = 124, 125, 126, 127
    STS = 8*U
    vH1, vSO, vSW_, vSR = 12, 13, 14, 15
    P(f"v_add_u32 v{vH1}, 65536, v{vL16}\nv_add_u32 v{vSO}, s{sL4}, v{vL16}\nv_add_u32 v16, 65536, v{vSO}")
    P(f"s_lshl_b32 s3, s{sw}, 8\ns_add_u32 s3, s3, {STS}\nv_lshl_add_u32 v{vSW_}, v23, 3, s3")
    P(f"v_lshlrev_b32 v9, 10, v22\nv_lshl_add_u32 v{vSR}, v23, 3, v9\nv_add_u32 v{vSR}, {STS}, v{vSR}")
    sAF = 62
    P(f"s_mul_i32 s{sAF}, s{srbC}, {4*112}\ns_lshl_b32 s3, s{sfs}, 3\ns_add_u32 s{sAF}, s{sAF}, s3\ns_add_u32 s{sAF}, s{sAF}, s{sw}\ns_lshl_b32 s{sAF}, s{sAF}, 10\ns_add_u32 s{sAF}, s{sAF}, {WS_AF}")
    def stats_fill(t):
        F = []
        a = vSO if t < 2 else 16
        s0, s1 = 26, 27
        def first():
            VM.wait(f"h{t}")
            P(f"v_mov_b32 v{s0}, 0\nv_mov_b32 v{s1}, 0")
        F.append(first)
        for half in range(2):
            F.append(lambda half=half: [LG.op(f"sf{i}", f"ds_read_b128 {vr(SF+4*i,4)}, v{a} offset:{(t%2)*32768+(2*half+i)*1024}") for i in range(2)])
            F.append(lambda: None)
            for j in range(8):
                def d(j=j):
                    LG.wait(f"sf{j//4}")
                    P(f"v_dot2_f32_bf16 v{s0}, v{SF+j}, v{vONE}, v{s0}\nv_dot2_f32_bf16 v{s1}, v{SF+j}, v{SF+j}, v{s1}")
                F.append(d)
        F.append(lambda: P(f"v_mov_b32 v{SF}, v{s0}\nv_mov_b32 v{SF+1}, v{s1}"))
        F.append(lambda: P(f"v_permlane32_swap_b32 v{s0}, v{SF}\nv_permlane32_swap_b32 v{s1}, v{SF+1}"))
        F.append(lambda: P(f"v_add_f32 v{s0}, v{s0}, v{SF}\nv_add_f32 v{s1}, v{s1}, v{SF+1}"))
        F.append(lambda: LG.op("w", f"ds_write_b64 v{vSW_}, v[{s0}:{s1}] offset:{t*2048}"))
        return F
    def epi_fill(t):
        F = []
        A = A2[t & 1]
        F.append(lambda: [LG.op("sp", f"ds_read_b64 {vr(SP+2*j,2)}, v{vSR} offset:{t*2048+j*256}") for j in range(4)])
        F.append(lambda: None)
        def c1():
            LG.wait("sp")
            P(f"v_add_f32 v{SP}, v{SP}, v{SP+2}\nv_add_f32 v{SP+1}, v{SP+1}, v{SP+3}\nv_add_f32 v{SP+4}, v{SP+4}, v{SP+6}\nv_add_f32 v{SP+5}, v{SP+5}, v{SP+7}")
        F.append(c1)
        F.append(lambda: P(f"v_add_f32 v{SP}, v{SP}, v{SP+4}\nv_add_f32 v{SP+1}, v{SP+1}, v{SP+5}\nv_mov_b32 v{SP+2}, v{SP}\nv_mov_b32 v{SP+3}, v{SP+1}"))
        F.append(lambda: P(f"v_permlane32_swap_b32 v{SP}, v{SP+2}\nv_permlane32_swap_b32 v{SP+1}, v{SP+3}\nv_mov_b32 v{vV}, {EPS5:#x}"))
        F.append(lambda: P(f"v_add_f32 v{SP}, v{SP}, v{SP+2}\nv_add_f32 v{SP+1}, v{SP+1}, v{SP+3}\nv_mul_f32 v{vNM}, {f2u(-1.0/512):#x}, v{SP}\nv_fmac_f32 v{vV}, {f2u(1.0/512):#x}, v{SP+1}"))
        F.append(lambda: P(f"v_fma_f32 v{vV}, -v{vNM}, v{vNM}, v{vV}\nv_rsq_f32 v{vA0}, v{vV}"))
        F.append(lambda: P(f"v_mul_f32 v{vA1}, v{vA0}, v{vA0}\nv_mul_f32 v{vA1}, v{vA1}, v{vA0}\nv_mul_f32 v{vA0}, s{sc_c0}, v{vA0}\nv_mul_f32 v{vA1}, s{sc_c1}, v{vA1}"))
        ops = [
            lambda r: f"v_fmac_f32 v{A+r}, v{vNM}, v{CS+r}",
            lambda r: f"v_mul_f32 v{ET+r}, v{A+r}, v{A+r}",
            lambda r: f"v_fma_f32 v{ET+r}, v{ET+r}, v{vA1}, v{vA0}",
            lambda r: f"v_mul_f32 v{ET+r}, v{ET+r}, v{A+r}",
            lambda r: f"v_exp_f32 v{ET+r}, v{ET+r}",
            lambda r: f"v_fmac_f32 v{A+8+r}, v{vNM}, v{CS+8+r}",
            lambda r: f"v_fma_f32 v{ET+r}, v{ET+r}, v{vV}, v{vV}",
            lambda r: f"v_rcp_f32 v{ET+r}, v{ET+r}",
            lambda r: f"v_mul_f32 v{A+r}, v{A+r}, v{A+8+r}",
            lambda r: f"v_mul_f32 v{A+r}, v{A+r}, v{ET+r}",
        ]
        for half in range(2):
            for o in ops:
                F.append(lambda o=o, half=half: P("\n".join(o(r) for r in range(4*half, 4*half+4))))
        F.append(lambda: P("\n".join(f"v_cvt_pk_bf16_f32 v{PK+i}, v{A+2*i}, v{A+2*i+1}" for i in range(4))))
        def s():
            P(f"s_add_u32 s{t0}, s{sAF}, {t*112*1024}")
            VM.op(f"as{t}", f"buffer_store_dwordx4 {vr(PK,4)}, v{vL16}, {sr(SWS)}, s{t0} offen sc1")
        F.append(s)
        return F
    def flagC(val):
        lab = f"L_fc{val}"
        P(f"s_cmp_eq_u32 s{sw}, 0\ns_cbranch_scc0 {lab}\ns_mov_b64 exec, 1\nv_mov_b32 v9, {val}")
        P(f"buffer_store_dword v9, v{vFC}, {sr(SWS)}, 0 offen sc1\ns_mov_b64 exec, -1\n{lab}:")
    for t in range(4):
        VM.wait(f"h{t}")
        if t >= 2: VM.wait(f"as{t-2}")
        LG.all(); P("s_barrier")
        stamp()
        if t >= 2: flagC(t - 1)
        a = vL16 if t < 2 else vH1
        def rd(n): LG.op(f"hf{n}", f"ds_read_b128 {vr(HF_+4*(n&3),4)}, v{a} offset:{(t%2)*32768+n*1024}")
        for n in range(3): rd(n)
        if t == 0:
            dma_h(2); dma_h(3); dma_wd(*early[0])
            F = stats_fill(0) + stats_fill(1)
        else:
            dma_wd(*early[2*t-1]); dma_wd(*early[2*t])
            F = epi_fill(t - 1) + (stats_fill(t + 1) if t < 3 else [])
        k = 0
        for n in range(32):
            if n + 3 < 32: rd(n + 3)
            LG.wait(f"hf{n}")
            c = "0" if n == 0 else vr(A2[t&1], 16)
            P(f"v_mfma_f32_32x32x16_bf16 {vr(A2[t&1],16)}, {vr(WC+4*n,4)}, {vr(HF_+4*(n&3),4)}, {c}")
            lim = (len(F) * (n + 1) + 29) // 30
            while k < min(lim, len(F)):
                F[k](); k += 1
    stamp()
    VM.wait("as2"); P("s_barrier"); flagC(3)
    for f in epi_fill(3): f()
    VM.all(); P("s_barrier"); flagC(4)
    P("L_djoin:")
    mark(None); mark("B")
    stamp()
    WD, AF_, DACC = 128, 64, 32
    vD0, vD1 = 12, 13
    def wd_read(ks):
        base, per = wslot[ks]
        P(f"s_lshl_b32 s3, s{sw}, {per}\ns_add_u32 s3, s3, {base}\nv_add_u32 v{vD0}, s3, v18\nv_xor_b32 v{vD1}, 64, v{vD0}")
        for ct in range(2):
            for i in range(2):
                LG.op(f"wr{ks}", f"ds_read_b64_tr_b16 {vr(WD+8*ks+4*ct+2*i,2)}, v{vD0+ct} offset:{i*1024}")
    for ks in range(7): wd_read(ks)
    P(f"s_mul_i32 s{t2}, s{sw}, 14\ns_lshr_b32 s{t0}, s{t2}, 3\ns_add_u32 s{t1}, s{t2}, 13\ns_lshr_b32 s{t1}, s{t1}, 3\nv_add_u32 v14, s{t0}, v1\nv_min_u32 v14, s{t1}, v14\nv_lshlrev_b32 v14, 7, v14")
    sFC = 60
    P(f"s_lshl_b32 s{sFC}, s{srb}, 11\ns_add_u32 s{sFC}, s{sFC}, {WS_FC}")
    def pollC(s):
        if s == 0: P(f"s_add_u32 s3, s{su}, 1")
        else: P(f"s_sub_u32 s3, 4, s{su}")
        P(f"s_mov_b64 exec, 7\ns_mov_b32 s{sspin}, {SPIN}")
        P(f"L_p3{s}:\nbuffer_load_dword v11, v14, {sr(SWS)}, s{sFC} offen sc1\ns_sub_u32 s{sspin}, s{sspin}, 1\ns_waitcnt vmcnt(0)\ns_cbranch_scc1 L_p3x{s}")
        P(f"v_cmp_gt_u32 vcc, s3, v11\ns_cbranch_vccnz L_p3{s}\nL_p3x{s}:\ns_mov_b64 exec, -1")
        VM.done = VM.n
    sA = 61
    def a_base(s):
        P(f"s_mul_i32 s{sA}, s{sT+s}, 112\ns_add_u32 s{sA}, s{sA}, s{t2}\ns_lshl_b32 s{sA}, s{sA}, 10\ns_add_u32 s{sA}, s{sA}, {WS_AF}")
    def a_load(ks):
        if ks and ks % 4 == 0: P(f"s_add_u32 s{sA}, s{sA}, 4096")
        VM.op(f"a{ks}", f"buffer_load_dwordx4 {vr(AF_+4*ks,4)}, v{vL16}, {sr(SWS)}, s{sA} offen offset:{(ks%4)*1024} sc1")
    a_base(0)
    pollC(0)
    LG.all()
    for ks in range(14):
        if ks >= 7: dma_wd(ks, *early[ks-7][1:])
        a_load(ks)
    vRW, vRR, vHW, vOUT = 15, 16, 17, 19
    P(f"v_xor_b32 v9, v22, v7\nv_lshlrev_b32 v9, 4, v9\nv_lshl_add_u32 v9, v23, 8, v9\ns_lshl_b32 s3, s{sw}, 13\nv_add_u32 v{vRW}, s3, v9")
    P(f"s_lshl_b32 s3, s{sq}, 6\nv_xor_b32 v{vHW}, s3, v9\nv_add_u32 v{vHW}, 65536, v{vHW}")
    P(f"s_lshl_b32 s3, s{sw}, 2\nv_add_u32 v9, s3, v8\nv_and_b32 v11, 7, v9\nv_and_b32 v20, 15, v1\nv_xor_b32 v11, v11, v20\nv_lshlrev_b32 v11, 4, v11\nv_lshl_add_u32 v{vRR}, v9, 8, v11")
    P(f"v_lshlrev_b32 v{vOUT}, 10, v9\nv_lshl_add_u32 v{vOUT}, v20, 3, v{vOUT}\ns_lshl_b32 s3, s{scb}, 7\nv_add_u32 v{vOUT}, s3, v{vOUT}")
    P(f"v_xor_b32 v21, 32, v{vRW}\nv_xor_b32 v24, 64, v{vRW}\nv_xor_b32 v25, 96, v{vRW}\nv_xor_b32 v26, 32, v{vHW}\nv_add_u32 v27, 65536, v{vRR}")
    HX = 240
    P("s_mov_b32 s3, 0xffff0000")
    for i in range(4): P(f"v_lshlrev_b32 v{HX+2*i}, 16, v{HRES+i}\nv_and_b32 v{HX+2*i+1}, s3, v{HRES+i}")
    def dpass(s):
        for ks in range(14):
            if s == 0 and 7 <= ks + 1 < 14:
                VM.wait(f"wd{ks+1}"); wd_read(ks + 1)
            VM.wait(f"a{ks}")
            if s == 0: LG.wait(f"wr{ks}")
            for ct in range(2):
                c = "0" if ks == 0 else vr(DACC+16*ct, 16)
                P(f"v_mfma_f32_32x32x16_bf16 {vr(DACC+16*ct,16)}, {vr(WD+8*ks+4*ct,4)}, {vr(AF_+4*ks,4)}, {c}")
    def dwrite(s):
        wr = [vRW, 21, 24, 25]
        for ct in range(2):
            for q in range(4):
                LG.op("w", f"ds_write_b128 v{wr[q]}, {vr(DACC+16*ct+4*q,4)} offset:{ct*128}")
        P(f"s_cmp_eq_u32 s{st}, {s}\ns_cbranch_scc0 L_dh{s}")
        P(f"ds_write_b128 v{vHW}, {vr(HX,4)}\nds_write_b128 v26, {vr(HX+4,4)}\nL_dh{s}:")
        LG.all(True); P("s_barrier")
    def dreduce(s):
        LG.op("r8", f"ds_read_b128 v[120:123], v27")
        for k in range(8): LG.op(f"r{k}", f"ds_read_b128 {vr(DACC+4*k,4)}, v{vRR} offset:{k*8192}")
        P(f"s_lshl_b32 s{t0}, s{sT+s}, 15")
        for k in range(8):
            LG.wait(f"r{k}")
            for e in (0, 2): P(f"v_pk_add_f32 v[{120+e}:{121+e}], v[{120+e}:{121+e}], {vr(DACC+4*k+e,2)}")
        P("v_cvt_pk_bf16_f32 v124, v120, v121\nv_cvt_pk_bf16_f32 v125, v122, v123")
        VM.op("o", f"buffer_store_dwordx2 v[124:125], v{vOUT}, {sr(SOUT)}, s{t0} offen")
    dpass(0)
    stamp()
    a_base(1)
    P("s_barrier")
    dwrite(0)
    dreduce(0)
    pollC(1)
    stamp()
    for ks in range(14): a_load(ks)
    dpass(1)
    P("s_barrier")
    dwrite(1)
    dreduce(1)
    mark(None)
    if OPT["stamps"]:
        stamp()
        P(f"s_memtime s[100:101]\ns_waitcnt lgkmcnt(0)\ns_sub_u32 s98, s100, s99")
        P("s_waitcnt vmcnt(0)")
        n = nst[0]
        P(f"s_mov_b64 exec, 1\ns_lshl_b32 s{t0}, s2, 3\ns_add_u32 s{t0}, s{t0}, s{sw}\ns_lshl_b32 s{t0}, s{t0}, 7\ns_add_u32 s{t0}, s{t0}, {WS_STAMP}\nv_mov_b32 v1, 0")
        for i in range(n):
            P(f"v_mov_b32 v2, s{70+i}\nbuffer_store_dword v2, v1, {sr(SWS)}, s{t0} offen offset:{4*i}")
        P(f"v_mov_b32 v2, s98\nbuffer_store_dword v2, v1, {sr(SWS)}, s{t0} offen offset:124")
        print("stamps", n)
    P("L_exit:\ns_endpgm")
    P.raw(f""".section .rodata,"a"
.p2align 6
.amdhsa_kernel {kn}
  .amdhsa_next_free_vgpr 256
  .amdhsa_next_free_sgpr 102
  .amdhsa_accum_offset 256
  .amdhsa_group_segment_fixed_size 0
  .amdhsa_kernarg_size 80
  .amdhsa_user_sgpr_count 2
  .amdhsa_user_sgpr_kernarg_segment_ptr 1
  .amdhsa_system_sgpr_workgroup_id_x 1
.end_amdhsa_kernel""")
    open(out, "w").write(P.finalize())
    print("pads", P.npads, "nops", P.nnops)

if __name__ == "__main__":
    for a in sys.argv[2:]:
        k, _, v = a.lstrip("-").partition("=")
        OPT[k] = int(v) if v else True
    gen(sys.argv[1])
```
